```python
import torch

def _softmax(x, axis=-1):
    return torch.softmax(x, dim=axis)

def _gelu(x):
    return torch.nn.functional.gelu(x, approximate='tanh')

def _silu(x):
    return torch.nn.functional.silu(x)

def _sigmoid(x):
    return torch.sigmoid(x)

def _layernorm(x, axis=-1, eps=1e-05):
    m = x.mean(dim=axis, keepdim=True)
    v = x.var(dim=axis, keepdim=True, unbiased=False)
    return (x - m) / torch.sqrt(v + eps)

def _scatter_add(tgt, idx, src, axis=0):
    return tgt.clone().index_add_(axis, idx, src)

def _segment_sum(src, seg, n):
    out = torch.zeros((n,) + src.shape[1:], dtype=src.dtype)
    return out.index_add_(0, seg, src)

def _pad(x, pw):
    flat = tuple((v for pair in reversed(pw) for v in pair))
    return torch.nn.functional.pad(x, flat)
kernel_name = 'sequential_preLN__grouped_kv_mqa__mixer_gmlp__prompt'

def setup_inputs():

    _w = lambda a: (lambda t: t.to(torch.bfloat16) if t.is_floating_point() else t)(torch.as_tensor(a))

    def _A_setup():
        B, S, D, H = (1, 2048, 1024, 32)
        Dh = D // H
        return {'x': _w((lambda *s: torch.randn(*s, dtype=torch.bfloat16) * 0.05)(B, S, D)), 'wq': _w((lambda *s: torch.randn(*s, dtype=torch.bfloat16) * 0.05)(D, H * Dh)), 'wk': _w((lambda *s: torch.randn(*s, dtype=torch.bfloat16) * 0.05)(D, Dh)), 'wv': _w((lambda *s: torch.randn(*s, dtype=torch.bfloat16) * 0.05)(D, Dh)), 'wo': _w((lambda *s: torch.randn(*s, dtype=torch.bfloat16) * 0.05)(H * Dh, D))}
    _A_in = _A_setup()

    def _B_setup():
        B, S, D, F = (1, 2048, 1024, 3584)
        Fh = F // 2
        return {'x': _w((lambda *s: torch.randn(*s, dtype=torch.bfloat16) * 0.05)(B, S, D)), 'w_in': _w((lambda *s: torch.randn(*s, dtype=torch.bfloat16) * 1.6)(D, 2 * Fh)), 'w_sp': _w(0.01 * (lambda *s: torch.randn(*s, dtype=torch.bfloat16) * 1.6)(S, S)), 'b_sp': _w(1.0 + 0.01 * (lambda *s: torch.randn(*s, dtype=torch.bfloat16) * 0.05)(S)), 'w_out': _w((lambda *s: torch.randn(*s, dtype=torch.bfloat16) * 0.05)(Fh, D))}
    _B_in = _B_setup()
    return {'A_x': _A_in['x'], 'A_wq': _A_in['wq'], 'A_wk': _A_in['wk'], 'A_wv': _A_in['wv'], 'A_wo': _A_in['wo'], 'B_x': _B_in['x'], 'B_w_in': _B_in['w_in'], 'B_w_sp': _B_in['w_sp'], 'B_b_sp': _B_in['b_sp'], 'B_w_out': _B_in['w_out']}

def reference(A_x, A_wq, A_wk, A_wv, A_wo, B_x, B_w_in, B_w_sp, B_b_sp, B_w_out):

    def _A_ref(x, wq, wk, wv, wo):
        B, S, D = x.shape
        H = 32
        Dh = D // H
        q = (lambda x, *d: x.permute(*d))((x @ wq).reshape(B, S, H, Dh), 0, 2, 1, 3)
        k = x @ wk
        v = x @ wv
        scores = torch.einsum('bhqd,bkd->bhqk', q, k) * Dh ** (-0.5)
        p = _softmax(scores, axis=-1)
        o = torch.einsum('bhqk,bkd->bhqd', p, v)
        return (lambda x, *d: x.permute(*d))(o, 0, 2, 1, 3).reshape(B, S, H * Dh) @ wo

    def _B_ref(x, w_in, w_sp, b_sp, w_out):
        B, S, D = x.shape
        F = w_in.shape[-1]
        Fh = F // 2
        z = _gelu(torch.einsum('bsd,df->bsf', x, w_in))
        z1 = z[..., :Fh].clone()
        z2 = _layernorm(z[..., Fh:], axis=-1)
        g = torch.einsum('ts,bsf->btf', w_sp, z2) + b_sp[None, :, None]
        return torch.einsum('bsf,fd->bsd', z1 * g, w_out)
    x = A_x
    h = x + _A_ref(_layernorm(x, axis=-1), A_wq, A_wk, A_wv, A_wo)
    h2 = h + _B_ref(_layernorm(h, axis=-1), B_w_in, B_w_sp, B_b_sp, B_w_out)
    return h2
```

```python
import struct

def f2u(x):
    return struct.unpack("<I", struct.pack("<f", x))[0]

class Kern:
    def __init__(self, name, grid, block, lds):
        self.name = name; self.grid = grid; self.block = block; self.lds = lds
        self.L = []
        self.nv = 1
        self.ns = 4
        self.na = 0
        self.uid = 0
    def e(self, s):
        for ln in s.strip().split("\n"):
            ln = ln.strip()
            if not ln: continue
            if ln.endswith(":"): self.L.append(ln)
            else: self.L.append("    " + ln)
    def c(self, s): self.L.append("    ; " + s)
    def lab(self, base):
        self.uid += 1
        return f"L_{self.name}_{base}_{self.uid}"
    def v(self, n=1, al=None):
        if al is None: al = 1 if n == 1 else (2 if n < 4 else 4)
        b = (self.nv + al - 1) // al * al
        self.nv = b + n
        assert self.nv <= 256, f"{self.name}: vgpr overflow"
        return b
    def s(self, n=1, al=None):
        if al is None: al = 1 if n == 1 else (2 if n < 4 else 4)
        b = (self.ns + al - 1) // al * al
        self.ns = b + n
        assert self.ns <= 100, f"{self.name}: sgpr overflow"
        return b
    def launch_line(self):
        return f"; @launch kernel={self.name} grid=({self.grid},1,1) block=({self.block},1,1) lds={self.lds}"
    def text(self):
        o = [f".globl {self.name}", ".p2align 8", f".type {self.name},@function", f"{self.name}:"]
        o += self.L
        return "\n".join(o)
    def desc(self):
        nv = max(self.nv, 8)
        acc = (nv + 3) // 4 * 4
        tot = acc + self.na if self.na else nv
        return "\n".join([
            ".p2align 6",
            f".amdhsa_kernel {self.name}",
            f"  .amdhsa_next_free_vgpr {tot}",
            f"  .amdhsa_next_free_sgpr {max(self.ns, 16)}",
            f"  .amdhsa_accum_offset {acc}",
            "  .amdhsa_group_segment_fixed_size 0",
            "  .amdhsa_kernarg_size 104",
            "  .amdhsa_user_sgpr_count 2",
            "  .amdhsa_user_sgpr_kernarg_segment_ptr 1",
            "  .amdhsa_system_sgpr_workgroup_id_x 1",
            ".end_amdhsa_kernel"])
    def srd(self, ptr, size, add=None):
        d = self.s(4)
        if add is None:
            self.e(f"s_mov_b32 s{d}, s{ptr}\ns_mov_b32 s{d+1}, s{ptr+1}")
        else:
            self.e(f"s_add_u32 s{d}, s{ptr}, {add}\ns_addc_u32 s{d+1}, s{ptr+1}, 0")
        self.e(f"s_mov_b32 s{d+2}, {size}\ns_mov_b32 s{d+3}, 0x20000")
        return d

def vr(b, n):
    return f"v{b}" if n == 1 else f"v[{b}:{b+n-1}]"
def sr(b, n):
    return f"s{b}" if n == 1 else f"s[{b}:{b+n-1}]"

def interleave(main, fill, start=0, end=None):
    if end is None: end = len(main)
    n = end - start
    out = []
    k = 0
    for i, m in enumerate(main):
        out.append(m)
        if start <= i < end:
            tgt = (len(fill) * (i - start + 1) + n - 1) // n
            while k < min(tgt, len(fill)):
                out.append(fill[k]); k += 1
    out += fill[k:]
    return out

def assemble_file(header, kerns):
    o = [header.rstrip()]
    for k in kerns: o.append(k.launch_line())
    o.append('.amdgcn_target "amdgcn-amd-amdhsa--gfx950"')
    o.append(".text")
    seen = []
    for k in kerns:
        if k.name in seen: continue
        seen.append(k.name)
        o.append(k.text())
    o.append('.section .rodata,"a"')
    seen = []
    for k in kerns:
        if k.name in seen: continue
        seen.append(k.name)
        o.append(k.desc())
    return "\n".join(o) + "\n"
```

```python
from asmlib import *
from gen import *

class Op:
    pass

def op_linear(k, G, base, nper, srd, so_init, step, nfrag, sub_stride, first_frag_sgpr_expr, half=False):
    o = Op(); o.base = base; o.ndma = nper; o.nfrag = nfrag
    vd, sm = k.v(), k.s()
    k.e(f"""
    s_mul_i32 s{sm}, s{k.sw}, {nper*1024}
    v_add_u32 v{vd}, s{sm}, v{G.v16}
    s_add_u32 s{sm}, s{sm}, {base}
    """)
    def dma():
        r = [f"s_add_u32 m0, s{G.swr}, s{sm}", "s_nop 0"]
        for j in range(nper):
            r.append(f"buffer_load_dwordx4 v{vd}, {sr(srd,4)}, s{so_init} offen offset:{j*1024} lds")
        r.append(f"s_add_u32 s{so_init}, s{so_init}, {step}")
        return r
    o.dma = dma
    def late():
        st, cur = k.v(), k.v()
        k.e(first_frag_sgpr_expr)
        k.e(f"s_add_u32 s3, s3, {base}")
        if half: k.e(f"v_lshlrev_b32 v{st}, 3, v{k.vl}\nv_add_u32 v{st}, s3, v{st}")
        else: k.e(f"v_add_u32 v{st}, s3, v{G.v16}")
        o.bases = [(cur, st)]
        if half:
            o.read = lambda sub, i, dst: [f"ds_read_b64 {vr(dst+2*q,2)}, v{cur} offset:{(2*sub+q)*4096+i*512}" for q in range(2)]
        else:
            o.read = lambda sub, i, dst: [f"ds_read_b128 {vr(dst,4)}, v{cur} offset:{sub*sub_stride+i*1024}"]
    o.late = late
    return o

def op_w(k, G, base, RS, ldw, srd, so_init, nfrag, t0_sgpr):
    o = Op(); o.base = base; o.nfrag = nfrag
    CPR = RS // 16
    n = CPR // 4
    o.ndma = n
    vd = [k.v() for _ in range(n)]
    sm = k.s()
    ci, row, t = G.t0, G.t1, G.t2
    k.e(f"s_mul_i32 s{sm}, s{k.sw}, {n*64}")
    for j in range(n):
        k.e(f"v_add_u32 v{ci}, s{sm}, v{k.vl}")
        if j: k.e(f"v_add_u32 v{ci}, {j*64}, v{ci}")
        if CPR == 8:
            k.e(f"""
            v_lshrrev_b32 v{row}, 3, v{ci}
            v_and_b32 v{ci}, 7, v{ci}
            v_bfe_u32 v{t}, v{row}, 1, 2
            """)
        else:
            assert CPR == 28
            k.e(f"""
            v_mul_u32_u24 v{row}, 2341, v{ci}
            v_lshrrev_b32 v{row}, 16, v{row}
            v_mul_u32_u24 v{t}, 28, v{row}
            v_sub_u32 v{ci}, v{ci}, v{t}
            v_bfe_u32 v{t}, v{row}, 2, 1
            """)
        k.e(f"""
        v_lshlrev_b32 v{t}, 1, v{t}
        v_xor_b32 v{ci}, v{ci}, v{t}
        v_mul_u32_u24 v{row}, {ldw}, v{row}
        v_lshl_add_u32 v{vd[j]}, v{ci}, 4, v{row}
        """)
        if j % 4: k.e(f"v_subrev_u32 v{vd[j]}, {(j%4)*1024}, v{vd[j]}")
    k.e(f"s_lshl_b32 s{sm}, s{sm}, 4\ns_add_u32 s{sm}, s{sm}, {base}")
    sm2 = None
    if n > 4:
        sm2 = k.s(); k.e(f"s_add_u32 s{sm2}, s{sm}, 4096")
    def dma():
        r = []
        for j in range(n):
            if j % 4 == 0:
                r += [f"s_add_u32 m0, s{G.swr}, s{sm if j == 0 else sm2}", "s_nop 0"]
            r.append(f"buffer_load_dwordx4 v{vd[j]}, {sr(srd,4)}, s{so_init} offen offset:{(j%4)*1024} lds")
        r.append(f"s_add_u32 s{so_init}, s{so_init}, {64*ldw}")
        return r
    o.dma = dma
    def late():
        sa, ca, sb, cb = k.v(), k.v(), k.v(), k.v()
        k.e(f"""
        v_lshrrev_b32 v{t}, 2, v{k.vl}
        v_mul_u32_u24 v{row}, {RS}, v{t}
        v_and_b32 v{t}, 3, v{k.vl}
        v_lshl_add_u32 v{row}, v{t}, 3, v{row}
        v_add_u32 v{row}, {base}, v{row}
        """)
        if CPR == 8:
            assert nfrag == 2
            k.e(f"""
            v_bfe_u32 v{t}, v{k.vl}, 3, 2
            v_xor_b32 v{t}, s{t0_sgpr}, v{t}
            v_lshl_add_u32 v{sa}, v{t}, 5, v{row}
            v_xor_b32 v{t}, 1, v{t}
            v_lshl_add_u32 v{sb}, v{t}, 5, v{row}
            """)
            o.read = lambda sub, i, dst: [f"ds_read_b64_tr_b16 {vr(dst+2*q,2)}, v{ca if i == 0 else cb} offset:{(32*sub+16*q)*RS}" for q in range(2)]
        else:
            k.e(f"""
            v_bfe_u32 v{t}, v{k.vl}, 4, 1
            v_xor_b32 v{ci}, s{t0_sgpr}, v{t}
            v_lshl_add_u32 v{sa}, v{ci}, 5, v{row}
            s_add_u32 s3, s{t0_sgpr}, 1
            v_xor_b32 v{ci}, s3, v{t}
            v_subrev_u32 v{ci}, 1, v{ci}
            v_lshl_add_u32 v{sb}, v{ci}, 5, v{row}
            """)
            o.read = lambda sub, i, dst: [f"ds_read_b64_tr_b16 {vr(dst+2*q,2)}, v{ca if i % 2 == 0 else cb} offset:{(32*sub+16*q)*RS+32*i}" for q in range(2)]
        o.bases = [(ca, sa), (cb, sb)]
    o.late = late
    return o

def rowimg_dma_offsets(k, G, ld):
    vd = [k.v() for _ in range(4)]
    t, t2, row = G.t0, G.t1, G.t2
    for j in range(4):
        k.e(f"""
        v_lshrrev_b32 v{row}, 3, v{k.vl}
        s_lshl_b32 s3, s{k.sw}, 5
        s_add_u32 s3, s3, {8*j}
        v_add_u32 v{row}, s3, v{row}
        v_bfe_u32 v{t}, v{row}, 1, 3
        v_and_b32 v{t2}, 7, v{k.vl}
        v_xor_b32 v{t}, v{t}, v{t2}
        v_mul_u32_u24 v{row}, {ld}, v{row}
        v_lshl_add_u32 v{vd[j]}, v{t}, 4, v{row}
        """)
        if j: k.e(f"v_subrev_u32 v{vd[j]}, {j*1024}, v{vd[j]}")
    return vd

def rowimg_base0(k, G, dst, row0_expr, base):
    t, t2 = G.t0, G.t1
    k.e(row0_expr)
    k.e(f"""
    s_lshl_b32 s3, s3, 7
    s_add_u32 s3, s3, {base}
    v_and_b32 v{t}, 15, v{k.vl}
    v_lshlrev_b32 v{dst}, 7, v{t}
    v_lshrrev_b32 v{t}, 1, v{t}
    v_lshrrev_b32 v{t2}, 5, v{k.vl}
    v_xor_b32 v{t}, v{t}, v{t2}
    v_lshl_add_u32 v{dst}, v{t}, 4, v{dst}
    v_bfe_u32 v{t}, v{k.vl}, 4, 1
    v_lshl_add_u32 v{dst}, v{t}, 3, v{dst}
    v_add_u32 v{dst}, s3, v{dst}
    """)

def op_r(k, G, base, ld, srd, so_init, nfrag):
    o = Op(); o.base = base; o.nfrag = nfrag; o.ndma = 4
    vd = rowimg_dma_offsets(k, G, ld)
    sm = k.s()
    k.e(f"s_lshl_b32 s{sm}, s{k.sw}, 12\ns_add_u32 s{sm}, s{sm}, {base}")
    def dma():
        r = [f"s_add_u32 m0, s{G.swr}, s{sm}", "s_nop 0"]
        for j in range(4):
            r.append(f"buffer_load_dwordx4 v{vd[j]}, {sr(srd,4)}, s{so_init} offen offset:{j*1024} lds")
        r.append(f"s_add_u32 s{so_init}, s{so_init}, 128")
        return r
    o.dma = dma
    def late():
        st = [k.v() for _ in range(4)]; cur = [k.v() for _ in range(4)]
        rowimg_base0(k, G, st[0], f"s_lshl_b32 s3, s{k.sw}, 5", base)
        for x in range(1, 4): k.e(f"v_xor_b32 v{st[x]}, {x*32}, v{st[0]}")
        o.bases = list(zip(cur, st))
        o.read = lambda sub, i, dst: [f"ds_read_b64 {vr(dst+2*q,2)}, v{cur[2*sub+q]} offset:{i*2048}" for q in range(2)]
    o.late = late
    return o

class Gemm:
    def __init__(self, k, NS, SZ, NSTG):
        self.k = k; self.NS = NS; self.SZ = SZ; self.NSTG = NSTG
        self.swr, self.srd, self.cnt = k.s(), k.s(), k.s()
        self.v16 = k.v(); self.t0, self.t1, self.t2 = k.v(), k.v(), k.v()
        k.e(f"v_lshlrev_b32 v{self.v16}, 4, v{k.vl}\ns_mov_b32 s{self.swr}, 0\ns_mov_b32 s{self.srd}, 0")
    def adv(self, s):
        return [f"s_add_u32 s{s}, s{s}, {self.SZ}", f"s_cmp_eq_u32 s{s}, {self.NS*self.SZ}", f"s_cselect_b32 s{s}, 0, s{s}"]
    def dma(self):
        r = []
        for o in self.ops: r += o.dma()
        return r + self.adv(self.swr)
    def start(self, opA, opB):
        k = self.k
        self.A, self.B = opA, opB
        self.ops = [opA, opB]
        self.D = opA.ndma + opB.ndma
        for i in range(self.NS): k.e("\n".join(self.dma()))
        opA.late(); opB.late()
        na, nb = opA.nfrag, opB.nfrag
        self.acc = k.v(4*na*nb)
        self.FA = [k.v(4*na), k.v(4*na)]
        self.FB = [k.v(4*nb), k.v(4*nb)]
        for i in range(4*na*nb): k.e(f"v_mov_b32 v{self.acc+i}, 0")
    def a(self, i, j): return self.acc + 4*(i*self.B.nfrag + j)
    def reads(self, sub, st):
        ra = [self.A.read(sub, i, self.FA[st] + 4*i) for i in range(self.A.nfrag)]
        rb = [self.B.read(sub, i, self.FB[st] + 4*i) for i in range(self.B.nfrag)]
        r = []
        for x in rb + ra: r += x
        return r
    def mfmas(self, st, swap):
        r = []
        for i in range(self.A.nfrag):
            for j in range(self.B.nfrag):
                a, b = vr(self.FA[st]+4*i, 4), vr(self.FB[st]+4*j, 4)
                if swap: a, b = b, a
                r.append(f"v_mfma_f32_16x16x32_bf16 {vr(self.a(i,j),4)}, {a}, {b}, {vr(self.a(i,j),4)}")
        return r
    def setbases(self):
        r = []
        for o in self.ops:
            for cur, st in o.bases: r.append(f"v_add_u32 v{cur}, s{self.srd}, v{st}")
        return r + self.adv(self.srd)
    def first(self):
        k = self.k
        k.e("\n".join(self.setbases()))
        k.e(f"s_waitcnt vmcnt({(self.NS-1)*self.D})\ns_barrier")
        k.e("\n".join(self.reads(0, 0)))
    def iteration(self, swap, vm, dma, last=False):
        k = self.k
        m0 = self.mfmas(0, swap); m1 = self.mfmas(1, swap)
        n = len(m0)
        k.e("s_waitcnt lgkmcnt(0)")
        f = self.reads(1, 1) + ([] if last else self.setbases())
        k.e("\n".join(interleave(m0, f, 0, max(1, (n*3)//4))))
        if last:
            k.e("s_waitcnt lgkmcnt(0)")
            k.e("\n".join(m1))
            return
        k.e(f"s_waitcnt vmcnt({vm}) lgkmcnt(0)\ns_barrier")
        rd = self.reads(0, 0)
        k.e("\n".join(interleave(m1, rd + dma, 0, n)))
    def loop(self, swap, extra, nextra):
        k = self.k; NS, D = self.NS, self.D
        lab = k.lab("loop")
        k.e(f"s_mov_b32 s{self.cnt}, {self.NSTG-NS}\n{lab}:")
        self.iteration(swap, (NS-2)*D, self.dma())
        k.e(f"s_sub_u32 s{self.cnt}, s{self.cnt}, 1\ns_cmp_lg_u32 s{self.cnt}, 0\ns_cbranch_scc1 {lab}")
        for p in range(NS):
            if p == NS-1: self.iteration(swap, 0, [], last=True)
            else: self.iteration(swap, (NS-2-p)*D + (nextra if p > 0 else 0), extra if p == 0 else [])

def unpack2(k, src, lo, hi):
    k.e(f"v_lshlrev_b32 v{lo}, 16, v{src}\nv_and_b32 v{hi}, 0xffff0000, v{src}")

def k_oproj():
    NS, SZ = 5, 24576
    XT = NS*SZ; ST = XT + 16384
    k = Kern("oproj_kernel", 256, 256, ST + 8192)
    P = begin(k, 256, ["x", "wo", "ws"])
    tb, jn = tilemap(k, 2, 3)
    G = Gemm(k, NS, SZ, 16)
    th, chh, sob, sow, t0s, sxo = k.s(), k.s(), k.s(), k.s(), k.s(), k.s()
    k.e(f"""
    s_lshr_b32 s{th}, s{k.sw}, 1
    s_and_b32 s{chh}, s{k.sw}, 1
    s_lshl_b32 s{t0s}, s{chh}, 1
    s_lshl_b32 s{sob}, s{tb}, 18
    s_add_u32 s{sob}, s{sob}, {OO}
    s_lshl_b32 s{sow}, s{jn}, 7
    s_lshl_b32 s{sxo}, s{tb}, 18
    s_add_u32 s{sxo}, s{sxo}, s{sow}
    s_waitcnt lgkmcnt(0)
    """)
    rws = k.srd(P["ws"], Z1); rw = k.srd(P["wo"], 1024*1024*2); rx = k.srd(P["x"], 2048*1024*2)
    B = op_linear(k, G, 0, 4, rws, sob, 16384, 4, 8192, f"s_lshl_b32 s3, s{th}, 12")
    A = op_w(k, G, 16384, 128, 2048, rw, sow, 2, t0s)
    G.start(A, B)
    vdx = rowimg_dma_offsets(k, G, 2048)
    extra = [f"s_lshl_b32 s3, s{k.sw}, 12", f"s_add_u32 m0, s3, {XT}", "s_nop 0"] + \
            [f"buffer_load_dwordx4 v{vdx[j]}, {sr(rx,4)}, s{sxo} offen offset:{j*1024} lds" for j in range(4)]
    G.first()
    G.loop(False, extra, 4)
    vx0, vx1, vs = k.v(), k.v(), k.v()
    rowimg_base0(k, G, vx0, f"s_lshl_b32 s3, s{th}, 6", XT)
    k.e(f"""
    s_lshl_b32 s3, s{chh}, 6
    v_xor_b32 v{vx0}, s3, v{vx0}
    v_xor_b32 v{vx1}, 32, v{vx0}
    s_waitcnt vmcnt(0)
    s_barrier
    """)
    XR = G.FB[0]
    for ni in range(4):
        k.e(f"ds_read_b64 {vr(XR+4*ni,2)}, v{vx0} offset:{ni*2048}\nds_read_b64 {vr(XR+4*ni+2,2)}, v{vx1} offset:{ni*2048}")
    so = k.s()
    k.e(f"""
    v_and_b32 v{G.t0}, 15, v{k.vl}
    v_lshlrev_b32 v{vs}, 6, v{G.t0}
    v_lshrrev_b32 v{G.t0}, 4, v{k.vl}
    v_lshl_add_u32 v{vs}, v{G.t0}, 3, v{vs}
    s_lshl_b32 s3, s{th}, 12
    s_lshl_b32 s{so}, s{chh}, 5
    s_add_u32 s3, s3, s{so}
    s_add_u32 s3, s3, {ST}
    v_add_u32 v{vs}, s3, v{vs}
    s_lshl_b32 s{so}, s{tb}, 18
    s_lshl_b32 s3, s{jn}, 14
    s_add_u32 s{so}, s{so}, s3
    s_lshl_b32 s3, s{chh}, 13
    s_add_u32 s{so}, s{so}, s3
    s_lshl_b32 s3, s{th}, 12
    s_add_u32 s{so}, s{so}, s3
    s_add_u32 s{so}, s{so}, {HH}
    s_waitcnt lgkmcnt(0)
    """)
    OUT = G.FB[1]; SS = G.FA[0]
    for ni in range(4):
        s1, s2 = SS+2*ni, SS+2*ni+1
        for mi in range(2):
            a = G.a(mi, ni)
            for d in range(2):
                unpack2(k, XR+4*ni+2*mi+d, G.t0, G.t1)
                k.e(f"v_add_f32 v{a+2*d}, v{a+2*d}, v{G.t0}\nv_add_f32 v{a+2*d+1}, v{a+2*d+1}, v{G.t1}")
                k.e(f"v_cvt_pk_bf16_f32 v{OUT+4*ni+2*mi+d}, v{a+2*d}, v{a+2*d+1}")
            for i in range(4):
                if mi == 0 and i == 0: k.e(f"v_mov_b32 v{s1}, v{a}\nv_mul_f32 v{s2}, v{a}, v{a}")
                else: k.e(f"v_add_f32 v{s1}, v{s1}, v{a+i}\nv_fmac_f32 v{s2}, v{a+i}, v{a+i}")
        k.e(f"buffer_store_dwordx4 {vr(OUT+4*ni,4)}, v{G.v16}, {sr(rws,4)}, s{so} offen offset:{ni*1024}")
        k.e(f"ds_write_b64 v{vs}, {vr(s1,2)} offset:{ni*1024}")
    k.e(f"""
    s_waitcnt lgkmcnt(0)
    s_barrier
    s_cmp_ge_u32 s{k.sw}, 2
    s_cbranch_scc1 {k.end}
    v_lshlrev_b32 v{G.t0}, 6, v0
    v_add_u32 v{G.t0}, {ST}, v{G.t0}
    """)
    for i in range(4): k.e(f"ds_read_b128 {vr(XR+4*i,4)}, v{G.t0} offset:{16*i}")
    k.e(f"""
    s_lshl_b32 s{so}, s{tb}, 14
    s_lshl_b32 s3, s{jn}, 10
    s_add_u32 s{so}, s{so}, s3
    s_add_u32 s{so}, s{so}, {HST}
    v_lshlrev_b32 v{G.t0}, 3, v0
    s_waitcnt lgkmcnt(0)
    """)
    for i in range(1, 8):
        k.e(f"v_add_f32 v{XR}, v{XR}, v{XR+2*i}\nv_add_f32 v{XR+1}, v{XR+1}, v{XR+2*i+1}")
    k.e(f"buffer_store_dwordx2 {vr(XR,2)}, v{G.t0}, {sr(rws,4)}, s{so} offen")
    finish(k)
    return k

def stats_final(k, s1, s2, n):
    k.e(f"""
    v_mul_f32 v{s1}, {hex(f2u(1.0/n))}, v{s1}
    v_mul_f32 v{s2}, {hex(f2u(1.0/n))}, v{s2}
    v_fma_f32 v{s2}, -v{s1}, v{s1}, v{s2}
    v_max_f32 v{s2}, 0, v{s2}
    v_add_f32 v{s2}, {hex(f2u(1e-5))}, v{s2}
    v_rsq_f32 v{s2}, v{s2}
    s_nop 0
    v_mul_f32 v{s1}, v{s1}, v{s2}
    v_sub_f32 v{s1}, 0, v{s1}
    """)

def gelu4(k, x, tmp, c01):
    sc1, vc0 = c01
    for h in (0, 2):
        k.e(f"v_pk_mul_f32 {vr(tmp+h,2)}, {vr(x+h,2)}, {vr(x+h,2)}")
    for h in (0, 2):
        k.e(f"v_pk_fma_f32 {vr(tmp+h,2)}, {vr(tmp+h,2)}, {sr(sc1,2)}, {vr(vc0,2)}")
    for h in (0, 2):
        k.e(f"v_pk_mul_f32 {vr(tmp+h,2)}, {vr(tmp+h,2)}, {vr(x+h,2)}")
    for i in range(4): k.e(f"v_exp_f32 v{tmp+i}, v{tmp+i}")
    for h in (0, 2):
        k.e(f"v_pk_add_f32 {vr(tmp+h,2)}, {vr(tmp+h,2)}, 1.0 op_sel_hi:[1,0]")
    for i in range(4): k.e(f"v_rcp_f32 v{tmp+i}, v{tmp+i}")
    k.e("s_nop 0")
    for h in (0, 2):
        k.e(f"v_pk_mul_f32 {vr(x+h,2)}, {vr(x+h,2)}, {vr(tmp+h,2)}")

def k_win():
    NS, SZ = 3, 16384 + 28672
    TR = NS*SZ; TN = TR + 512; CL = TN + 512
    k = Kern("win_kernel", 256, 256, CL + 1024)
    P = begin(k, 256, ["w_in", "ws"])
    tb, jn = tilemap(k, 3, 2)
    G = Gemm(k, NS, SZ, 16)
    th, fh, sob, sow, t0s, so = k.s(), k.s(), k.s(), k.s(), k.s(), k.s()
    k.e(f"""
    s_lshr_b32 s{th}, s{k.sw}, 1
    s_and_b32 s{fh}, s{k.sw}, 1
    s_mul_i32 s{t0s}, s{fh}, 7
    s_lshl_b32 s{sob}, s{tb}, 18
    s_add_u32 s{sob}, s{sob}, {HH}
    s_mul_i32 s{sow}, s{jn}, 448
    s_waitcnt lgkmcnt(0)
    """)
    rws = k.srd(P["ws"], UU); rw = k.srd(P["w_in"], 1024*3584*2)
    TL = k.v(32); v8 = k.v()
    l2, l3 = k.lab("cs"), k.lab("tj")
    k.e(f"""
    v_and_b32 v{v8}, 127, v0
    v_lshlrev_b32 v{v8}, 3, v{v8}
    s_cmp_ge_u32 s{k.sw}, 2
    s_cbranch_scc1 {l2}
    s_lshl_b32 s{so}, s{tb}, 14
    s_add_u32 s{so}, s{so}, {HST}
    """)
    for p in range(16):
        k.e(f"buffer_load_dwordx2 {vr(TL+2*p,2)}, v{v8}, {sr(rws,4)}, s{so} offen offset:{(p%4)*1024}")
        if p % 4 == 3 and p < 15: k.e(f"s_add_u32 s{so}, s{so}, 4096")
    k.e(f"""
    s_branch {l3}
    {l2}:
    s_mul_i32 s{so}, s{jn}, 896
    s_add_u32 s{so}, s{so}, {CS}
    """)
    for p in range(8):
        k.e(f"buffer_load_dwordx2 {vr(TL+2*p,2)}, v{v8}, {sr(rws,4)}, s{so} offen")
        if p < 7: k.e(f"s_add_u32 s{so}, s{so}, {3584*4}")
    for p in range(16, 32): k.e(f"v_mov_b32 v{TL+p}, 0")
    k.e(f"{l3}:")
    B = op_linear(k, G, 0, 4, rws, sob, 16384, 4, 8192, f"s_lshl_b32 s3, s{th}, 12")
    A = op_w(k, G, 16384, 448, 7168, rw, sow, 7, t0s)
    G.start(A, B)
    k.e(f"s_waitcnt vmcnt({NS*G.D})")
    for p in range(1, 16):
        k.e(f"v_add_f32 v{TL}, v{TL}, v{TL+2*p}\nv_add_f32 v{TL+1}, v{TL+1}, v{TL+2*p+1}")
    l4, l5 = k.lab("cw"), k.lab("tw")
    k.e(f"s_cmp_ge_u32 s{k.sw}, 2\ns_cbranch_scc1 {l4}")
    stats_final(k, TL, TL+1, 1024)
    k.e(f"""
    v_lshlrev_b32 v{G.t0}, 2, v0
    v_add_u32 v{G.t0}, {TR}, v{G.t0}
    ds_write_b32 v{G.t0}, v{TL+1}
    ds_write_b32 v{G.t0}, v{TL} offset:512
    s_branch {l5}
    {l4}:
    v_add_u32 v{G.t0}, {CL}, v{v8}
    ds_write_b64 v{G.t0}, {vr(TL,2)}
    {l5}:
    s_waitcnt lgkmcnt(0)
    """)
    G.first()
    lz2 = k.lab("z2")
    k.e(f"s_cmp_ge_u32 s{jn}, 8\ns_cbranch_scc1 {lz2}")
    c0 = -2.0*0.7978845608028654*LOG2E; c1 = c0*0.044715
    sc1 = k.s(2); TMP = G.FA[1]+16; T2 = G.FA[1]+20; vc0 = G.FA[1]+24
    vg, vrr = G.FA[1]+26, G.FA[1]+27
    def epi_common():
        k.e(f"""
        s_mov_b32 s{sc1}, {hex(f2u(c1))}
        s_mov_b32 s{sc1+1}, {hex(f2u(c1))}
        v_mov_b32 v{vc0}, {hex(f2u(c0))}
        v_mov_b32 v{vc0+1}, {hex(f2u(c0))}
        v_lshrrev_b32 v{vg}, 4, v{k.vl}
        v_lshlrev_b32 v{vg}, 4, v{vg}
        v_and_b32 v{vrr}, 15, v{k.vl}
        v_lshlrev_b32 v{vrr}, 2, v{vrr}
        """)
    G.loop(False, [], 0)
    epi_common()
    CSV = G.FA[0]
    RS_, NM_ = G.FB[0], G.FB[0] + 8
    k.e(f"""
    s_mul_i32 s3, s{fh}, 448
    s_add_u32 s3, s3, {CL}
    v_add_u32 v{vg}, s3, v{vg}
    s_lshl_b32 s3, s{th}, 8
    s_add_u32 s3, s3, {TR}
    v_add_u32 v{vrr}, s3, v{vrr}
    """)
    for mi in range(7): k.e(f"ds_read_b128 {vr(CSV+4*mi,4)}, v{vg} offset:{64*mi}")
    for ni in range(4):
        k.e(f"ds_read_b32 v{RS_+2*ni}, v{vrr} offset:{64*ni}\nds_read_b32 v{NM_+2*ni}, v{vrr} offset:{512+64*ni}")
    k.e(f"""
    s_lshl_b32 s{so}, s{tb}, 1
    s_add_u32 s{so}, s{so}, s{th}
    s_mul_i32 s{so}, s{so}, 224
    s_mul_i32 s3, s{jn}, 14
    s_add_u32 s{so}, s{so}, s3
    s_add_u32 s{so}, s{so}, s{t0s}
    s_lshl_b32 s{so}, s{so}, 10
    s_add_u32 s{so}, s{so}, {Z1}
    s_waitcnt lgkmcnt(0)
    """)
    OUTS = G.FA[1]; oi = 0
    for np_ in range(2):
        for mi in range(7):
            o = OUTS + 4*(oi % 4); oi += 1
            for u in range(2):
                ni = 2*np_ + u; a = G.a(mi, ni)
                for h in (0, 2):
                    k.e(f"v_pk_mul_f32 {vr(T2+h,2)}, {vr(CSV+4*mi+h,2)}, {vr(NM_+2*ni,2)} op_sel_hi:[1,0]")
                for h in (0, 2):
                    k.e(f"v_pk_fma_f32 {vr(a+h,2)}, {vr(a+h,2)}, {vr(RS_+2*ni,2)}, {vr(T2+h,2)} op_sel_hi:[1,0,1]")
                gelu4(k, a, TMP, (sc1, vc0))
                k.e(f"v_cvt_pk_bf16_f32 v{o+2*u}, v{a}, v{a+1}\nv_cvt_pk_bf16_f32 v{o+2*u+1}, v{a+2}, v{a+3}")
            k.e(f"buffer_store_dwordx4 {vr(o,4)}, v{G.v16}, {sr(rws,4)}, s{so} offen offset:{(mi%4)*1024}")
            if mi == 3: k.e(f"s_add_u32 s{so}, s{so}, 4096")
        if np_ == 0: k.e(f"s_add_u32 s{so}, s{so}, {112*1024-4096}")
    k.e("s_endpgm")
    k.e(f"{lz2}:")
    G.loop(True, [], 0)
    epi_common()
    RV, NV = G.FB[0], G.FB[1]
    CV = G.FA[0]
    S1, S2 = TL, TL + 16
    k.e(f"""
    s_lshl_b32 s3, s{th}, 8
    s_add_u32 s3, s3, {TR}
    v_add_u32 v{G.t0}, s3, v{vg}
    s_mul_i32 s3, s{fh}, 448
    s_add_u32 s3, s3, {CL}
    v_add_u32 v{vrr}, s3, v{vrr}
    """)
    for ti in range(4):
        k.e(f"ds_read_b128 {vr(RV+4*ti,4)}, v{G.t0} offset:{64*ti}\nds_read_b128 {vr(NV+4*ti,4)}, v{G.t0} offset:{512+64*ti}")
    for fi in range(7): k.e(f"ds_read_b32 v{CV+2*fi}, v{vrr} offset:{64*fi}")
    k.e(f"""
    s_sub_u32 s{so}, s{jn}, 8
    s_lshl_b32 s{so}, s{so}, 1
    s_add_u32 s{so}, s{so}, s{fh}
    s_lshl_b32 s{sob}, s{so}, 10
    s_lshl_b32 s{so}, s{so}, 5
    s_lshl_b32 s3, s{tb}, 1
    s_add_u32 s{so}, s{so}, s3
    s_add_u32 s{so}, s{so}, s{th}
    s_mul_i32 s{so}, s{so}, 14336
    s_add_u32 s{so}, s{so}, {Z2T}
    """)
    for i in range(32): k.e(f"v_mov_b32 v{TL+i}, 0")
    k.e("s_waitcnt lgkmcnt(0)")
    oi = 0
    for kp in range(2):
        for fi in range(7):
            o = OUTS + 4*(oi % 4); oi += 1
            for u in range(2):
                ti = 2*kp + u; a = G.a(fi, ti)
                for h in (0, 2):
                    k.e(f"v_pk_mul_f32 {vr(T2+h,2)}, {vr(NV+4*ti+h,2)}, {vr(CV+2*fi,2)} op_sel_hi:[1,0]")
                for h in (0, 2):
                    k.e(f"v_pk_fma_f32 {vr(a+h,2)}, {vr(a+h,2)}, {vr(RV+4*ti+h,2)}, {vr(T2+h,2)}")
                gelu4(k, a, TMP, (sc1, vc0))
                k.e(f"v_cvt_pk_bf16_f32 v{o+2*u}, v{a}, v{a+1}\nv_cvt_pk_bf16_f32 v{o+2*u+1}, v{a+2}, v{a+3}")
                for h in (0, 2):
                    k.e(f"v_pk_add_f32 {vr(S1+4*ti+h,2)}, {vr(S1+4*ti+h,2)}, {vr(a+h,2)}")
                    k.e(f"v_pk_fma_f32 {vr(S2+4*ti+h,2)}, {vr(a+h,2)}, {vr(a+h,2)}, {vr(S2+4*ti+h,2)}")
            k.e(f"buffer_store_dwordx4 {vr(o,4)}, v{G.v16}, {sr(rws,4)}, s{so} offen offset:{(fi%4)*1024}")
            if fi == 3: k.e(f"s_add_u32 s{so}, s{so}, 4096")
        if kp == 0: k.e(f"s_add_u32 s{so}, s{so}, {7168-4096}")
    k.e("s_nop 1")
    for op in ["row_shr:1", "row_shr:2", "row_shr:4", "row_shr:8"]:
        for i in range(32):
            k.e(f"v_add_f32_dpp v{TL+i}, v{TL+i}, v{TL+i} {op} row_mask:0xf bank_mask:0xf")
    k.e(f"""
    s_lshl_b32 s3, s{tb}, 14
    s_add_u32 s{sob}, s{sob}, s3
    s_lshl_b32 s3, s{th}, 8
    s_add_u32 s{sob}, s{sob}, s3
    s_add_u32 s{sob}, s{sob}, {ZST}
    s_mov_b32 exec_lo, 0x80008000
    s_mov_b32 exec_hi, 0x80008000
    """)
    for ti in range(4):
        k.e(f"buffer_store_dwordx4 {vr(S1+4*ti,4)}, v{vg}, {sr(rws,4)}, s{sob} offen offset:{64*ti}")
        k.e(f"buffer_store_dwordx4 {vr(S2+4*ti,4)}, v{vg}, {sr(rws,4)}, s{sob} offen offset:{512+64*ti}")
    finish(k)
    return k

def k_znorm():
    k = Kern("znorm_kernel", 256, 256, 1024)
    P = begin(k, 256, ["ws"])
    ft, tb, so, so2 = k.s(), k.s(), k.s(), k.s()
    k.e(f"""
    s_and_b32 s{ft}, s2, 15
    s_lshr_b32 s{tb}, s2, 4
    s_lshl_b32 s{so}, s{ft}, 6
    s_lshl_b32 s3, s{tb}, 2
    s_add_u32 s{so}, s{so}, s3
    s_add_u32 s{so}, s{so}, s{k.sw}
    s_mul_i32 s{so}, s{so}, 7168
    s_add_u32 s{so}, s{so}, {Z2T}
    s_lshl_b32 s{so2}, s{tb}, 14
    s_add_u32 s{so2}, s{so2}, {ZST}
    s_waitcnt lgkmcnt(0)
    """)
    rws = k.srd(P["ws"], UU)
    v16, v4, t, t2 = k.v(), k.v(), k.v(), k.v()
    TL = k.v(16); Z = k.v(28); R = k.v(8); N = k.v(8)
    k.e(f"v_lshlrev_b32 v{v16}, 4, v{k.vl}\nv_lshlrev_b32 v{v4}, 2, v0")
    for p in range(16):
        k.e(f"buffer_load_dword v{TL+p}, v{v4}, {sr(rws,4)}, s{so2} offen offset:{(p%4)*1024}")
        if p % 4 == 3: k.e(f"s_add_u32 s{so2}, s{so2}, 4096")
    k.e(f"s_add_u32 s{so2}, s{so}, 4096")
    for i in range(7):
        k.e(f"buffer_load_dwordx4 {vr(Z+4*i,4)}, v{v16}, {sr(rws,4)}, s{so if i<4 else so2} offen offset:{(i%4)*1024}")
    k.e("s_waitcnt vmcnt(7)")
    for p in range(1, 16): k.e(f"v_add_f32 v{TL}, v{TL}, v{TL+p}")
    k.e(f"""
    ds_write_b32 v{v4}, v{TL}
    v_lshrrev_b32 v{t}, 4, v{k.vl}
    v_lshlrev_b32 v{t}, 4, v{t}
    s_lshl_b32 s3, s{k.sw}, 7
    v_add_u32 v{t}, s3, v{t}
    s_waitcnt lgkmcnt(0)
    s_barrier
    ds_read_b128 {vr(N,4)}, v{t}
    ds_read_b128 {vr(N+4,4)}, v{t} offset:64
    ds_read_b128 {vr(R,4)}, v{t} offset:512
    ds_read_b128 {vr(R+4,4)}, v{t} offset:576
    s_waitcnt lgkmcnt(0)
    """)
    for e in range(8): stats_final(k, N+e, R+e, 1792)
    k.e("s_waitcnt vmcnt(0)")
    for i in range(7):
        for d in range(4):
            z = Z + 4*i + d
            unpack2(k, z, t, t2)
            k.e(f"""
            v_fma_f32 v{t}, v{t}, v{R+2*d}, v{N+2*d}
            v_fma_f32 v{t2}, v{t2}, v{R+2*d+1}, v{N+2*d+1}
            v_cvt_pk_bf16_f32 v{z}, v{t}, v{t2}
            """)
        k.e(f"buffer_store_dwordx4 {vr(Z+4*i,4)}, v{v16}, {sr(rws,4)}, s{so if i<4 else so2} offen offset:{(i%4)*1024}")
    finish(k)
    return k

def k_spat():
    NS, SZ = 5, 32768
    k = Kern("spat_kernel", 256, 256, NS*SZ)
    P = begin(k, 256, ["w_sp", "b_sp", "ws"])
    tb, ft = tilemap(k, 2, 3)
    G = Gemm(k, NS, SZ, 32)
    soa, sow, so, so2 = k.s(), k.s(), k.s(), k.s()
    k.e(f"""
    s_mul_i32 s{soa}, s{ft}, {32*14336}
    s_add_u32 s{soa}, s{soa}, {Z2T}
    s_lshl_b32 s{sow}, s{tb}, 19
    s_waitcnt lgkmcnt(0)
    """)
    rws = k.srd(P["ws"], UU + 0x700000); rw = k.srd(P["w_sp"], 2048*2048*2); rb = k.srd(P["b_sp"], 4096)
    A = op_linear(k, G, 0, 4, rws, soa, 14336, 7, 7168, "s_mov_b32 s3, 0")
    B = op_r(k, G, 16384, 4096, rw, sow, 2)
    G.start(A, B)
    ZR = k.v(28); BB = k.v(2); vb = k.v()
    k.e(f"""
    s_lshl_b32 s{so}, s{tb}, 2
    s_add_u32 s{so}, s{so}, s{k.sw}
    s_lshl_b32 s3, s{so}, 6
    v_and_b32 v{vb}, 15, v{k.vl}
    v_lshlrev_b32 v{vb}, 1, v{vb}
    v_add_u32 v{vb}, s3, v{vb}
    s_mul_i32 s{so}, s{so}, 112
    s_mul_i32 s3, s{ft}, 7
    s_add_u32 s{so}, s{so}, s3
    s_lshl_b32 s{so}, s{so}, 10
    s_add_u32 s{so}, s{so}, {Z1}
    s_add_u32 s{so2}, s{so}, 4096
    """)
    extra = [f"buffer_load_dwordx4 {vr(ZR+4*i,4)}, v{G.v16}, {sr(rws,4)}, s{so if i<4 else so2} offen offset:{(i%4)*1024}" for i in range(7)]
    extra += [f"buffer_load_ushort v{BB+i}, v{vb}, {sr(rb,4)}, 0 offen offset:{32*i}" for i in range(2)]
    G.first()
    G.loop(False, extra, 9)
    v8 = k.v()
    k.e(f"""
    v_lshlrev_b32 v{v8}, 3, v{k.vl}
    s_mul_i32 s{so}, s{tb}, 112
    s_mul_i32 s3, s{ft}, 7
    s_add_u32 s{so}, s{so}, s3
    s_lshl_b32 s{so}, s{so}, 12
    s_lshl_b32 s3, s{k.sw}, 10
    s_add_u32 s{so}, s{so}, s3
    s_add_u32 s{so}, s{so}, {UU}
    s_waitcnt vmcnt(0)
    v_lshlrev_b32 v{BB}, 16, v{BB}
    v_lshlrev_b32 v{BB+1}, 16, v{BB+1}
    """)
    for mi in range(7):
        for ni in range(2):
            a = G.a(mi, ni)
            for d in range(2):
                z = ZR + 4*mi + 2*ni + d
                unpack2(k, z, G.t0, G.t1)
                k.e(f"""
                v_add_f32 v{a+2*d}, v{a+2*d}, v{BB+ni}
                v_add_f32 v{a+2*d+1}, v{a+2*d+1}, v{BB+ni}
                v_mul_f32 v{G.t0}, v{G.t0}, v{a+2*d}
                v_mul_f32 v{G.t1}, v{G.t1}, v{a+2*d+1}
                v_cvt_pk_bf16_f32 v{z}, v{G.t0}, v{G.t1}
                """)
            k.e(f"buffer_store_dwordx2 {vr(ZR+4*mi+2*ni,2)}, v{v8}, {sr(rws,4)}, s{so} offen offset:{ni*512}")
        if mi < 6: k.e(f"s_add_u32 s{so}, s{so}, 4096")
    finish(k)
    return k

def k_wout():
    NS, SZ = 5, 24576
    OT = NS*SZ
    k = Kern("wout_kernel", 256, 256, OT + 16384)
    P = begin(k, 256, ["w_out", "out", "ws"])
    tb, jn = tilemap(k, 2, 3)
    G = Gemm(k, NS, SZ, 28)
    th, chh, sob, sow, t0s, so = k.s(), k.s(), k.s(), k.s(), k.s(), k.s()
    k.e(f"""
    s_lshr_b32 s{th}, s{k.sw}, 1
    s_and_b32 s{chh}, s{k.sw}, 1
    s_lshl_b32 s{t0s}, s{chh}, 1
    s_mul_i32 s{sob}, s{tb}, {112*4096}
    s_add_u32 s{sob}, s{sob}, {UU}
    s_lshl_b32 s{sow}, s{jn}, 7
    s_waitcnt lgkmcnt(0)
    """)
    rws = k.srd(P["ws"], UU + 0x700000); rw = k.srd(P["w_out"], 1792*1024*2); ro = k.srd(P["out"], 2048*1024*2)
    B = op_linear(k, G, 0, 4, rws, sob, 16384, 4, 0, f"s_lshl_b32 s3, s{th}, 11", half=True)
    A = op_w(k, G, 16384, 128, 2048, rw, sow, 2, t0s)
    G.start(A, B)
    HR = k.v(16)
    k.e(f"""
    s_lshl_b32 s{so}, s{tb}, 18
    s_lshl_b32 s3, s{jn}, 14
    s_add_u32 s{so}, s{so}, s3
    s_lshl_b32 s3, s{chh}, 13
    s_add_u32 s{so}, s{so}, s3
    s_lshl_b32 s3, s{th}, 12
    s_add_u32 s{so}, s{so}, s3
    s_add_u32 s{so}, s{so}, {HH}
    """)
    extra = [f"buffer_load_dwordx4 {vr(HR+4*i,4)}, v{G.v16}, {sr(rws,4)}, s{so} offen offset:{i*1024}" for i in range(4)]
    vdo = rowimg_dma_offsets(k, G, 2048)
    G.first()
    G.loop(False, extra, 4)
    vx0, vx1 = k.v(), k.v()
    rowimg_base0(k, G, vx0, f"s_lshl_b32 s3, s{th}, 6", OT)
    k.e(f"""
    s_lshl_b32 s3, s{chh}, 6
    v_xor_b32 v{vx0}, s3, v{vx0}
    v_xor_b32 v{vx1}, 32, v{vx0}
    s_waitcnt vmcnt(0)
    """)
    for ni in range(4):
        for mi in range(2):
            a = G.a(mi, ni)
            for d in range(2):
                hreg = HR + 4*ni + 2*mi + d
                unpack2(k, hreg, G.t0, G.t1)
                k.e(f"v_add_f32 v{a+2*d}, v{a+2*d}, v{G.t0}\nv_add_f32 v{a+2*d+1}, v{a+2*d+1}, v{G.t1}")
                k.e(f"v_cvt_pk_bf16_f32 v{hreg}, v{a+2*d}, v{a+2*d+1}")
            k.e(f"ds_write_b64 v{vx0 if mi == 0 else vx1}, {vr(HR+4*ni+2*mi,2)} offset:{ni*2048}")
    k.e(f"""
    s_lshl_b32 s3, s{k.sw}, 12
    s_add_u32 s3, s3, {OT}
    v_add_u32 v{G.t0}, s3, v{G.v16}
    s_lshl_b32 s{so}, s{tb}, 18
    s_lshl_b32 s3, s{jn}, 7
    s_add_u32 s{so}, s{so}, s3
    s_waitcnt lgkmcnt(0)
    s_barrier
    """)
    for j in range(4): k.e(f"ds_read_b128 {vr(HR+4*j,4)}, v{G.t0} offset:{j*1024}")
    for j in range(4):
        k.e(f"s_waitcnt lgkmcnt({3-j})")
        k.e(f"buffer_store_dwordx4 {vr(HR+4*j,4)}, v{vdo[j]}, {sr(ro,4)}, s{so} offen offset:{j*1024}")
    finish(k)
    return k

def all_kernels():
    return [k_colsum(), k_prep(), k_attn(), k_oproj(), k_win(), k_znorm(), k_spat(), k_wout()]
```

```python
import sys, math
from asmlib import *

KA = dict(x=0, wq=8, wk=16, wv=24, wo=32, w_in=48, w_sp=56, b_sp=64, w_out=72, out=80, dbg=88, ws=96)
XN, KV, OO, HH, HST, CS = 0x0, 0x400000, 0x500000, 0x900000, 0xD00000, 0xD80000
Z1, Z2T, ZST, UU = 0xE00000, 0x1500000, 0x1C00000, 0x1D00000
WS_SIZE = 0x10000000
LOG2E = 1.4426950408889634

def begin(k, nwg, loads):
    k.end = f"L_{k.name}_end"
    k.e(f"s_cmp_ge_u32 s2, {nwg}\ns_cbranch_scc1 {k.end}")
    P = {}
    for n in loads:
        P[n] = k.s(2)
        k.e(f"s_load_dwordx2 {sr(P[n],2)}, s[0:1], {KA[n]}")
    k.sw = k.s()
    k.vl = k.v()
    k.e(f"v_lshrrev_b32 v{k.vl}, 6, v0\ns_nop 0\nv_readfirstlane_b32 s{k.sw}, v{k.vl}\nv_and_b32 v{k.vl}, 63, v0")
    return P

def finish(k):
    k.e(f"{k.end}:\ns_endpgm")

def tilemap(k, bm_log, bn_log):
    assert bm_log + bn_log == 5
    tm, tn, t = k.s(), k.s(), k.s()
    gn_log = 4 - bn_log
    k.e(f"""
    s_and_b32 s{t}, s2, 7
    s_lshr_b32 s{tm}, s{t}, {gn_log}
    s_lshl_b32 s{tm}, s{tm}, {bm_log}
    s_and_b32 s{tn}, s{t}, {(1<<gn_log)-1}
    s_lshl_b32 s{tn}, s{tn}, {bn_log}
    s_lshr_b32 s{t}, s2, {3+bn_log}
    s_add_u32 s{tm}, s{tm}, s{t}
    s_lshr_b32 s{t}, s2, 3
    s_and_b32 s{t}, s{t}, {(1<<bn_log)-1}
    s_add_u32 s{tn}, s{tn}, s{t}
    """)
    return tm, tn

def k_colsum():
    k = Kern("colsum_kernel", 224, 256, 8192)
    P = begin(k, 224, ["w_in", "ws"])
    cb, ks, so = k.s(), k.s(), k.s()
    k.e(f"""
    s_mul_i32 s{ks}, s2, 2341
    s_lshr_b32 s{ks}, s{ks}, 16
    s_mul_i32 s3, s{ks}, 28
    s_sub_u32 s{cb}, s2, s3
    s_lshl_b32 s{so}, s{ks}, 7
    s_lshl_b32 s3, s{k.sw}, 5
    s_add_u32 s{so}, s{so}, s3
    s_mul_i32 s{so}, s{so}, 7168
    s_lshl_b32 s3, s{cb}, 8
    s_add_u32 s{so}, s{so}, s3
    s_waitcnt lgkmcnt(0)
    """)
    rw = k.srd(P["w_in"], 1024*3584*2)
    rws = k.srd(P["ws"], 8*3584*4, CS)
    vo, t = k.v(), k.v()
    k.e(f"""
    v_lshrrev_b32 v{t}, 4, v{k.vl}
    v_mul_u32_u24 v{vo}, 7168, v{t}
    v_and_b32 v{t}, 15, v{k.vl}
    v_lshl_add_u32 v{vo}, v{t}, 4, v{vo}
    """)
    D = k.v(32); A = k.v(8)
    for j in range(8):
        k.e(f"buffer_load_dwordx4 {vr(D+4*j,4)}, v{vo}, {sr(rw,4)}, s{so} offen")
        if j < 7: k.e(f"s_add_u32 s{so}, s{so}, {4*7168}")
    for i in range(8): k.e(f"v_mov_b32 v{A+i}, 0")
    for j in range(8):
        k.e(f"s_waitcnt vmcnt({7-j})")
        for d in range(4):
            k.e(f"""
            v_lshlrev_b32 v{t}, 16, v{D+4*j+d}
            v_and_b32 v{D+4*j+d}, 0xffff0000, v{D+4*j+d}
            v_add_f32 v{A+2*d}, v{A+2*d}, v{t}
            v_add_f32 v{A+2*d+1}, v{A+2*d+1}, v{D+4*j+d}
            """)
    k.e(f"""
    v_lshlrev_b32 v{t}, 5, v0
    ds_write_b128 v{t}, {vr(A,4)}
    ds_write_b128 v{t}, {vr(A+4,4)} offset:16
    s_waitcnt lgkmcnt(0)
    s_barrier
    s_cmp_ge_u32 s{k.sw}, 2
    s_cbranch_scc1 {k.end}
    v_lshlrev_b32 v{t}, 2, v0
    """)
    for j in range(16): k.e(f"ds_read_b32 v{D+j}, v{t} offset:{j*512}")
    k.e("s_waitcnt lgkmcnt(0)")
    for j in range(1, 16): k.e(f"v_add_f32 v{D}, v{D}, v{D+j}")
    k.e(f"""
    s_mul_i32 s{so}, s{ks}, {3584*4}
    s_lshl_b32 s3, s{cb}, 9
    s_add_u32 s{so}, s{so}, s3
    buffer_store_dword v{D}, v{t}, {sr(rws,4)}, s{so} offen
    """)
    finish(k)
    return k

def k_prep():
    WL, XL = 0, 65536
    RED = XL + 34816
    k = Kern("prep_kernel", 256, 256, RED + 8192)
    P = begin(k, 256, ["x", "wk", "wv", "ws"])
    wh, tk, xo, xo2, so = k.s(), k.s(), k.s(), k.s(), k.s()
    pw = k.s(2)
    k.e(f"""
    s_lshr_b32 s{wh}, s2, 3
    s_and_b32 s{wh}, s{wh}, 1
    s_lshr_b32 s{tk}, s2, 4
    s_lshl_b32 s{tk}, s{tk}, 3
    s_and_b32 s3, s2, 7
    s_add_u32 s{tk}, s{tk}, s3
    s_lshl_b32 s{xo}, s{tk}, 15
    s_lshl_b32 s3, s{k.sw}, 13
    s_add_u32 s{xo}, s{xo}, s3
    s_add_u32 s{xo2}, s{xo}, 4096
    s_waitcnt lgkmcnt(0)
    s_cmp_eq_u32 s{wh}, 0
    s_cselect_b64 {sr(pw,2)}, {sr(P['wk'],2)}, {sr(P['wv'],2)}
    """)
    rx = k.srd(P["x"], 2048*1024*2)
    rw = k.srd(pw, 1024*32*2)
    rws = k.srd(P["ws"], OO)
    v16, vsw, t, t2 = k.v(), k.v(), k.v(), k.v()
    X = k.v(32)
    k.e(f"v_lshlrev_b32 v{v16}, 4, v{k.vl}")
    for r in range(4):
        for hf in range(2):
            k.e(f"buffer_load_dwordx4 {vr(X+8*r+4*hf,4)}, v{v16}, {sr(rx,4)}, s{xo if r<2 else xo2} offen offset:{(r&1)*2048+hf*1024}")
    k.e(f"""
    v_lshrrev_b32 v{t}, 5, v{k.vl}
    v_lshlrev_b32 v{t}, 5, v{t}
    v_xor_b32 v{vsw}, v{v16}, v{t}
    s_lshl_b32 s{so}, s{k.sw}, 14
    """)
    for jj in range(4):
        k.e(f"s_add_u32 m0, s{so}, {WL}\ns_nop 0")
        for j in range(4):
            k.e(f"buffer_load_dwordx4 v{vsw}, {sr(rw,4)}, s{so} offen offset:{j*1024} lds")
        if jj < 3: k.e(f"s_add_u32 s{so}, s{so}, 4096")
    ones = k.v(); S = k.v(8)
    k.e(f"v_mov_b32 v{ones}, 0x3f803f80")
    for i in range(8): k.e(f"v_mov_b32 v{S+i}, 0")
    k.e("s_waitcnt vmcnt(16)")
    for d in range(8):
        for r in range(4):
            k.e(f"v_dot2c_f32_bf16 v{S+r}, v{X+8*r+d}, v{ones}")
        for r in range(4):
            k.e(f"v_dot2c_f32_bf16 v{S+4+r}, v{X+8*r+d}, v{X+8*r+d}")
    k.e("s_nop 2")
    for op in ["row_shr:1 row_mask:0xf", "row_shr:2 row_mask:0xf", "row_shr:4 row_mask:0xf", "row_shr:8 row_mask:0xf",
               "row_bcast:15 row_mask:0xa", "row_bcast:31 row_mask:0xc"]:
        for i in range(8):
            k.e(f"v_add_f32_dpp v{S+i}, v{S+i}, v{S+i} {op} bank_mask:0xf")
    srs = k.s(4); snm = k.s(4)
    for r in range(4):
        k.e(f"v_mul_f32 v{S+r}, {hex(f2u(1/1024))}, v{S+r}")
        k.e(f"v_mul_f32 v{S+4+r}, {hex(f2u(1/1024))}, v{S+4+r}")
    for r in range(4):
        k.e(f"v_fma_f32 v{S+4+r}, -v{S+r}, v{S+r}, v{S+4+r}")
    for r in range(4):
        k.e(f"v_max_f32 v{S+4+r}, 0, v{S+4+r}")
    for r in range(4):
        k.e(f"v_add_f32 v{S+4+r}, {hex(f2u(1e-5))}, v{S+4+r}")
    for r in range(4):
        k.e(f"v_rsq_f32 v{S+4+r}, v{S+4+r}")
    k.e("s_nop 0")
    for r in range(4):
        k.e(f"v_mul_f32 v{S+r}, v{S+r}, v{S+4+r}")
    k.e("s_nop 0")
    for r in range(4):
        k.e(f"v_readlane_b32 s{srs+r}, v{S+4+r}, 63")
        k.e(f"v_readlane_b32 s{snm+r}, v{S+r}, 63")
    k.e("s_nop 1")
    vw = k.v()
    k.e(f"""
    v_mul_u32_u24 v{vw}, 272, v{k.vl}
    s_lshl_b32 s3, s{k.sw}, 6
    s_add_u32 s3, s3, {XL}
    v_add_u32 v{vw}, s3, v{vw}
    """)
    for r in range(4):
        k.e(f"v_mov_b32 v{S+r}, s{snm+r}")
    for r in range(4):
        for d in range(8):
            x = X + 8*r + d
            k.e(f"""
            v_lshlrev_b32 v{t}, 16, v{x}
            v_and_b32 v{t2}, 0xffff0000, v{x}
            v_fma_f32 v{t}, v{t}, s{srs+r}, -v{S+r}
            v_fma_f32 v{t2}, v{t2}, s{srs+r}, -v{S+r}
            v_cvt_pk_bf16_f32 v{x}, v{t}, v{t2}
            """)
        for hf in range(2):
            k.e(f"ds_write_b128 v{vw}, {vr(X+8*r+4*hf,4)} offset:{hf*17408+r*16}")
    vx, vb0, vb1, g = k.v(), k.v(), k.v(), k.v()
    k.e(f"""
    v_lshrrev_b32 v{g}, 4, v{k.vl}
    v_mul_u32_u24 v{vx}, 272, v{g}
    v_and_b32 v{t}, 15, v{k.vl}
    v_lshl_add_u32 v{vx}, v{t}, 4, v{vx}
    s_mul_i32 s3, s{k.sw}, {8*1088}
    s_add_u32 s3, s3, {XL}
    v_add_u32 v{vx}, s3, v{vx}
    """)
    k.e(f"""
    v_lshrrev_b32 v{t}, 2, v{t}
    v_lshl_add_u32 v{t}, v{g}, 3, v{t}
    v_lshlrev_b32 v{vb0}, 6, v{t}
    v_and_b32 v{t}, 3, v{k.vl}
    v_lshl_add_u32 v{vb0}, v{t}, 3, v{vb0}
    v_and_b32 v{t}, 1, v{g}
    v_lshl_add_u32 v{vb0}, v{t}, 5, v{vb0}
    s_lshl_b32 s3, s{k.sw}, 14
    v_add_u32 v{vb0}, s3, v{vb0}
    v_xor_b32 v{vb1}, 32, v{vb0}
    s_waitcnt vmcnt(0) lgkmcnt(0)
    s_barrier
    """)
    W = k.v(64); ACC = k.v(8)
    for kb in range(8):
        k.e(f"ds_read_b128 {vr(X+4*kb,4)}, v{vx} offset:{kb*1088}")
    for half in range(2):
        pass
    for kb in range(8):
        for nt in range(2):
            for q in range(2):
                k.e(f"ds_read_b64_tr_b16 {vr(W+8*kb+4*nt+2*q,2)}, v{vb0 if nt==0 else vb1} offset:{WL+kb*2048+q*256}")
        if kb % 2 == 1: k.e("s_waitcnt lgkmcnt(4)")
    k.e("s_waitcnt lgkmcnt(0)")
    k.e(f"""
    s_lshr_b32 s{so}, s{tk}, 3
    s_lshl_b32 s{so}, s{so}, 18
    s_lshl_b32 s3, s{k.sw}, 16
    s_add_u32 s{so}, s{so}, s3
    s_lshl_b32 s3, s{wh}, 13
    s_add_u32 s{so}, s{so}, s3
    s_and_b32 s3, s{tk}, 7
    s_lshl_b32 s3, s3, 10
    s_add_u32 s{so}, s{so}, s3
    """)
    lv, lj = k.lab("v"), k.lab("j")
    k.e(f"s_cmp_eq_u32 s{wh}, 1\ns_cbranch_scc1 {lv}")
    for which in range(2):
        if which == 1: k.e(f"{lv}:")
        for kb in range(8):
            for nt in range(2):
                a, b = vr(W+8*kb+4*nt,4), vr(X+4*kb,4)
                if which == 1: a, b = b, a
                c = "0" if kb == 0 else vr(ACC+4*nt,4)
                k.e(f"v_mfma_f32_16x16x32_bf16 {vr(ACC+4*nt,4)}, {a}, {b}, {c}")
        for i in range(4):
            k.e(f"buffer_store_dwordx4 {vr(X+4*(2*i+which),4)}, v{v16}, {sr(rws,4)}, s{so} offen")
            if i < 3: k.e(f"s_add_u32 s{so}, s{so}, 16384")
        if which == 0: k.e(f"s_branch {lj}")
    k.e(f"{lj}:")
    k.e(f"""
    s_lshl_b32 s3, s{k.sw}, 11
    s_add_u32 s3, s3, {RED}
    v_add_u32 v{t}, s3, v{v16}
    s_nop 7
    ds_write_b128 v{t}, {vr(ACC,4)}
    ds_write_b128 v{t}, {vr(ACC+4,4)} offset:1024
    s_waitcnt lgkmcnt(0)
    s_barrier
    s_cmp_ge_u32 s{k.sw}, 2
    s_cbranch_scc1 {k.end}
    s_lshl_b32 s3, s{k.sw}, 10
    s_add_u32 s3, s3, {RED}
    v_add_u32 v{t}, s3, v{v16}
    """)
    for w in range(4): k.e(f"ds_read_b128 {vr(W+4*w,4)}, v{t} offset:{w*2048}")
    sa, sh = k.s(), k.s()
    k.e(f"""
    s_and_b32 s3, s{tk}, 1
    s_cmp_eq_u32 s{wh}, 0
    s_cselect_b32 s{sa}, s{k.sw}, s3
    s_cselect_b32 s{sh}, s3, s{k.sw}
    s_lshr_b32 s{so}, s{tk}, 1
    s_lshl_b32 s{so}, s{so}, 12
    s_lshl_b32 s3, s{wh}, 11
    s_add_u32 s{so}, s{so}, s3
    s_lshl_b32 s3, s{sa}, 10
    s_add_u32 s{so}, s{so}, s3
    s_lshl_b32 s3, s{sh}, 8
    s_add_u32 s{so}, s{so}, s3
    s_add_u32 s{so}, s{so}, {KV}
    v_and_b32 v{t}, 15, v{k.vl}
    v_lshlrev_b32 v{t}, 4, v{t}
    v_and_b32 v{t2}, 1, v{g}
    v_lshl_add_u32 v{t}, v{t2}, 9, v{t}
    v_lshrrev_b32 v{t2}, 1, v{g}
    v_lshl_add_u32 v{t}, v{t2}, 3, v{t}
    s_waitcnt lgkmcnt(0)
    """)
    for i in range(4):
        k.e(f"v_add_f32 v{W+i}, v{W+i}, v{W+4+i}\nv_add_f32 v{W+8+i}, v{W+8+i}, v{W+12+i}")
    for i in range(4):
        k.e(f"v_add_f32 v{W+i}, v{W+i}, v{W+8+i}")
    k.e(f"""
    v_cvt_pk_bf16_f32 v{W}, v{W}, v{W+1}
    v_cvt_pk_bf16_f32 v{W+1}, v{W+2}, v{W+3}
    buffer_store_dwordx2 {vr(W,2)}, v{t}, {sr(rws,4)}, s{so} offen
    """)
    finish(k)
    return k

def k_attn():
    NS = 4; SZ = 24576; NSTG = 16
    FLAG = 0
    k = Kern("attn_kernel", 256, 512, 163840)
    P = begin(k, 256, ["wq", "ws"])
    tb, hp = tilemap(k, 2, 3)
    hd, tt = k.s(), k.s()
    sxo, swo, swr, srd_, sm0x, sm0w, cnt = k.s(), k.s(), k.s(), k.s(), k.s(), k.s(), k.s()
    k.e(f"""
    s_lshr_b32 s{hd}, s{k.sw}, 2
    s_and_b32 s{tt}, s{k.sw}, 3
    s_lshl_b32 s{sxo}, s{tb}, 18
    s_lshl_b32 s{swo}, s{hp}, 7
    s_lshl_b32 s{sm0x}, s{k.sw}, 11
    s_lshl_b32 s{sm0w}, s{k.sw}, 10
    s_add_u32 s{sm0w}, s{sm0w}, 16384
    s_mov_b32 s{swr}, 0
    s_waitcnt lgkmcnt(0)
    """)
    rq = k.srd(P["wq"], 1024*1024*2)
    rws = k.srd(P["ws"], HH)
    v16, vdx, vdw, t, t2 = k.v(), k.v(), k.v(), k.v(), k.v()
    k.e(f"""
    v_lshlrev_b32 v{v16}, 4, v{k.vl}
    v_add_u32 v{vdx}, s{sm0x}, v{v16}
    v_lshrrev_b32 v{t}, 3, v0
    v_lshlrev_b32 v{vdw}, 11, v{t}
    v_and_b32 v{t}, 7, v{k.vl}
    v_bfe_u32 v{t2}, v{k.vl}, 4, 1
    v_lshlrev_b32 v{t2}, 2, v{t2}
    v_xor_b32 v{t}, v{t}, v{t2}
    v_lshl_add_u32 v{vdw}, v{t}, 4, v{vdw}
    """)
    def dma_stage():
        return [f"s_add_u32 m0, s{swr}, s{sm0x}",
                f"s_nop 0",
                f"buffer_load_dwordx4 v{vdx}, {sr(rws,4)}, s{sxo} offen lds",
                f"buffer_load_dwordx4 v{vdx}, {sr(rws,4)}, s{sxo} offen offset:1024 lds",
                f"s_add_u32 m0, s{swr}, s{sm0w}",
                f"s_add_u32 s{sxo}, s{sxo}, 16384",
                f"buffer_load_dwordx4 v{vdw}, {sr(rq,4)}, s{swo} offen lds",
                f"s_add_u32 s{swo}, s{swo}, 131072",
                f"s_add_u32 s{swr}, s{swr}, {SZ}",
                f"s_cmp_eq_u32 s{swr}, {NS*SZ}",
                f"s_cselect_b32 s{swr}, 0, s{swr}"]
    for i in range(NS-1):
        k.e("\n".join(dma_stage()))
    vB0, vA0, vB, vA = k.v(), k.v(), k.v(), k.v()
    h, b4, j = k.v(), k.v(), k.v()
    k.e(f"""
    v_lshrrev_b32 v{h}, 5, v{k.vl}
    v_bfe_u32 v{b4}, v{k.vl}, 4, 1
    v_and_b32 v{j}, 15, v{k.vl}
    v_lshlrev_b32 v{vB0}, 4, v{j}
    v_lshl_add_u32 v{vB0}, v{h}, 8, v{vB0}
    v_lshl_add_u32 v{vB0}, v{b4}, 10, v{vB0}
    s_lshl_b32 s3, s{tt}, 11
    v_add_u32 v{vB0}, s3, v{vB0}
    v_lshrrev_b32 v{t}, 2, v{j}
    v_lshl_add_u32 v{t}, v{h}, 3, v{t}
    v_lshlrev_b32 v{vA0}, 7, v{t}
    v_and_b32 v{t}, 3, v{j}
    v_lshl_add_u32 v{vA0}, v{t}, 3, v{vA0}
    v_lshl_add_u32 v{vA0}, v{b4}, 5, v{vA0}
    v_lshrrev_b32 v{t}, 3, v{j}
    v_xor_b32 v{t}, s{hd}, v{t}
    v_lshl_add_u32 v{vA0}, v{t}, 6, v{vA0}
    v_add_u32 v{vA0}, 16384, v{vA0}
    s_mov_b32 s{srd_}, 0
    """)
    S0 = k.v(16, 4); S1 = k.v(16, 4); C = k.v(16, 4); O = k.v(16, 4)
    Q = k.v(8); Pp = k.v(8); L = k.v(4); ONES = k.v(4); KF = k.v(8); VF = k.v(8)
    FB, FA, QA = S0, S1, O
    for i in range(16): k.e(f"v_mov_b32 v{QA+i}, 0")
    skv, skvw, vdk = k.s(), k.s(), k.v()
    k.e(f"""
    s_lshl_b32 s3, s{k.sw}, 12
    v_add_u32 v{vdk}, s3, v{v16}
    """)
    def dma_kv(lds_base_expr):
        o = [f"s_lshl_b32 s3, s{k.sw}, 12", f"s_add_u32 m0, s3, {lds_base_expr}", "s_nop 0"]
        for jx in range(4):
            o.append(f"buffer_load_dwordx4 v{vdk}, {sr(rws,4)}, s{skv} offen offset:{jx*1024} lds")
        o.append(f"s_add_u32 s{skv}, s{skv}, 32768")
        return o
    def stageA(vm, dma):
        k.e(f"s_waitcnt vmcnt({vm})\ns_barrier")
        k.e(f"v_add_u32 v{vB}, s{srd_}, v{vB0}\nv_add_u32 v{vA}, s{srd_}, v{vA0}")
        rd = []
        for st in range(4):
            rd.append(f"ds_read_b128 {vr(FB+4*st,4)}, v{vB} offset:{(st>>1)*8192+(st&1)*512}")
            for q in range(2):
                rd.append(f"ds_read_b64_tr_b16 {vr(FA+4*st+2*q,2)}, v{vA} offset:{st*2048+q*512}")
        k.e("\n".join(rd))
        k.e("\n".join(dma))
        k.e(f"s_add_u32 s{srd_}, s{srd_}, {SZ}\ns_cmp_eq_u32 s{srd_}, {NS*SZ}\ns_cselect_b32 s{srd_}, 0, s{srd_}")
        for st in range(4):
            k.e(f"s_waitcnt lgkmcnt({9-3*st})")
            k.e(f"v_mfma_f32_32x32x16_bf16 {vr(QA,16)}, {vr(FA+4*st,4)}, {vr(FB+4*st,4)}, {vr(QA,16)}")
    la = k.lab("qloop")
    k.e(f"s_mov_b32 s{cnt}, {NSTG-NS+1}\n{la}:")
    stageA(3*(NS-2), dma_stage())
    k.e(f"s_sub_u32 s{cnt}, s{cnt}, 1\ns_cmp_lg_u32 s{cnt}, 0\ns_cbranch_scc1 {la}")
    k.e(f"s_mov_b32 s{skv}, {KV}")
    for p in range(NS-1):
        rem = NS-2-p
        if p == 0: stageA(3*rem, dma_kv(98304) + dma_kv(131072))
        else: stageA(3*rem + 8, [])
    qs = (32 ** -0.5) * LOG2E
    k.e(f"""
    v_bfe_u32 v{t}, v{k.vl}, 2, 1
    v_cmp_eq_u32 vcc, v{t}, v{b4}
    v_mov_b32 v{t2}, 0x3f803f80
    s_nop 7
    s_nop 3
    """)
    for i in range(4): k.e(f"v_cndmask_b32 v{ONES+i}, 0, v{t2}, vcc")
    for i in range(16): k.e(f"v_mul_f32 v{QA+i}, {hex(f2u(qs))}, v{QA+i}")
    for i in range(8): k.e(f"v_cvt_pk_bf16_f32 v{Q+i}, v{QA+2*i}, v{QA+2*i+1}")
    exact, sc, snx = k.s(), k.s(), k.s()
    vC, vN = k.v(), k.v()
    k.e(f"s_mov_b32 s{exact}, 0")
    lstart = k.lab("bstart")
    k.e(f"{lstart}:")
    k.e(f"""
    s_waitcnt vmcnt(4)
    s_barrier
    v_add_u32 v{vC}, 98304, v{v16}
    v_add_u32 v{vN}, 131072, v{v16}
    s_mov_b32 s{snx}, 65536
    s_mov_b32 s{sc}, 0
    ds_read_b128 {vr(KF,4)}, v{vC}
    ds_read_b128 {vr(KF+4,4)}, v{vC} offset:1024
    """)
    for i in range(16): k.e(f"v_mov_b32 v{O+i}, 0")
    for i in range(4): k.e(f"v_mov_b32 v{L+i}, 0")
    lskip = k.lab("skipmax")
    k.e(f"""
    s_waitcnt lgkmcnt(0)
    s_cmp_lg_u32 s{exact}, 0
    s_cbranch_scc1 {lskip}
    v_mfma_f32_32x32x16_bf16 {vr(S0,16)}, {vr(KF,4)}, {vr(Q,4)}, 0
    v_mfma_f32_32x32x16_bf16 {vr(S0,16)}, {vr(KF+4,4)}, {vr(Q+4,4)}, {vr(S0,16)}
    s_nop 15
    s_nop 3
    v_max_f32 v{t}, v{S0}, v{S0+1}
    """)
    for i in range(2, 16, 2): k.e(f"v_max3_f32 v{t}, v{t}, v{S0+i}, v{S0+i+1}")
    def finish_max():
        k.e(f"""
        v_mov_b32 v{t2}, v{t}
        s_nop 1
        v_permlane32_swap_b32 v{t}, v{t2}
        s_nop 1
        v_max_f32 v{t}, v{t}, v{t2}
        v_sub_f32 v{t}, 0, v{t}
        """)
        for i in range(16): k.e(f"v_mov_b32 v{C+i}, v{t}")
        k.e("s_nop 1")
    finish_max()
    k.e(f"""
    {lskip}:
    v_mfma_f32_32x32x16_bf16 {vr(S0,16)}, {vr(KF,4)}, {vr(Q,4)}, {vr(C,16)}
    v_mfma_f32_32x32x16_bf16 {vr(S0,16)}, {vr(KF+4,4)}, {vr(Q+4,4)}, {vr(S0,16)}
    ds_read_b128 {vr(KF,4)}, v{vC} offset:4096
    ds_read_b128 {vr(KF+4,4)}, v{vC} offset:5120
    ds_read_b128 {vr(VF,4)}, v{vC} offset:2048
    ds_read_b128 {vr(VF+4,4)}, v{vC} offset:3072
    s_nop 7
    """)
    lb = k.lab("bloop")
    k.e(f"{lb}:")
    for n in range(8):
        Sc, Sn = (S0, S1) if n % 2 == 0 else (S1, S0)
        if n == 4:
            lnd = k.lab("nodma")
            k.e(f"s_waitcnt vmcnt(0)\ns_barrier\ns_cmp_ge_u32 s{sc}, 6\ns_cbranch_scc1 {lnd}")
            k.e("\n".join(dma_kv(f"s{snx}")))
            k.e(f"{lnd}:")
        def rdaddr(blk, off):
            return (f"v{vC} offset:{blk*4096+off}" if blk < 8 else f"v{vN} offset:{(blk-8)*4096+off}")
        ex = lambda i: f"v_exp_f32 v{Sc+i}, v{Sc+i}"
        cv = lambda i: f"v_cvt_pk_bf16_f32 v{Pp+i}, v{Sc+2*i}, v{Sc+2*i+1}"
        k.e(f"""
        s_waitcnt lgkmcnt(2)
        v_mfma_f32_32x32x16_bf16 {vr(Sn,16)}, {vr(KF,4)}, {vr(Q,4)}, {vr(C,16)}
        {ex(0)}
        {ex(1)}
        {ex(2)}
        {ex(3)}
        v_mfma_f32_32x32x16_bf16 {vr(Sn,16)}, {vr(KF+4,4)}, {vr(Q+4,4)}, {vr(Sn,16)}
        ds_read_b128 {vr(KF,4)}, {rdaddr(n+2,0)}
        ds_read_b128 {vr(KF+4,4)}, {rdaddr(n+2,1024)}
        {ex(4)}
        {cv(0)}
        {ex(5)}
        {cv(1)}
        {ex(6)}
        {ex(7)}
        {cv(2)}
        {ex(8)}
        {cv(3)}
        {ex(9)}
        s_waitcnt lgkmcnt(2)
        {ex(10)}
        v_mfma_f32_32x32x16_bf16 {vr(O,16)}, {vr(VF,4)}, {vr(Pp,4)}, {vr(O,16)}
        {ex(11)}
        {cv(4)}
        {ex(12)}
        {ex(13)}
        v_mfma_f32_16x16x32_bf16 {vr(L,4)}, {vr(ONES,4)}, {vr(Pp,4)}, {vr(L,4)}
        {cv(5)}
        {ex(14)}
        {ex(15)}
        {cv(6)}
        {cv(7)}
        s_nop 1
        v_mfma_f32_32x32x16_bf16 {vr(O,16)}, {vr(VF+4,4)}, {vr(Pp+4,4)}, {vr(O,16)}
        v_mfma_f32_16x16x32_bf16 {vr(L,4)}, {vr(ONES,4)}, {vr(Pp+4,4)}, {vr(L,4)}
        ds_read_b128 {vr(VF,4)}, {rdaddr(n+1,2048)}
        ds_read_b128 {vr(VF+4,4)}, {rdaddr(n+1,3072)}
        """)
    k.e(f"""
    v_mov_b32 v{vC}, v{vN}
    v_add_u32 v{vN}, s{snx}, v{v16}
    s_add_u32 s{snx}, s{snx}, 32768
    s_cmp_eq_u32 s{snx}, 163840
    s_cselect_b32 s{snx}, 65536, s{snx}
    s_add_u32 s{sc}, s{sc}, 1
    s_cmp_lt_u32 s{sc}, 8
    s_cbranch_scc1 {lb}
    s_waitcnt lgkmcnt(0)
    s_nop 15
    """)
    lout = k.lab("out"); lnb = k.lab("nobad")
    k.e(f"""
    s_cmp_lg_u32 s{exact}, 0
    s_cbranch_scc1 {lout}
    v_mov_b32 v{t}, {hex(f2u(2.0**100))}
    v_cmp_nlt_f32 vcc, v{L}, v{t}
    v_mov_b32 v{t}, 0
    s_cmp_lg_u64 vcc, 0
    s_cselect_b32 s3, 1, 0
    v_mov_b32 v{t2}, s3
    s_lshl_b32 s3, s{k.sw}, 2
    v_mov_b32 v{t}, s3
    ds_write_b32 v{t}, v{t2} offset:{FLAG}
    v_mov_b32 v{t}, 0
    s_waitcnt lgkmcnt(0)
    s_barrier
    ds_read_b128 {vr(KF,4)}, v{t} offset:{FLAG}
    ds_read_b128 {vr(KF+4,4)}, v{t} offset:{FLAG+16}
    s_waitcnt lgkmcnt(0)
    v_or3_b32 v{KF}, v{KF}, v{KF+1}, v{KF+2}
    v_or3_b32 v{KF}, v{KF}, v{KF+3}, v{KF+4}
    v_or3_b32 v{KF}, v{KF}, v{KF+5}, v{KF+6}
    v_or_b32 v{KF}, v{KF}, v{KF+7}
    s_nop 1
    v_readfirstlane_b32 s3, v{KF}
    s_nop 3
    s_cmp_eq_u32 s3, 0
    s_cbranch_scc1 {lout}
    """)
    lm = k.lab("maxloop")
    k.e(f"""
    s_mov_b32 s{exact}, 1
    s_mov_b32 s{skv}, {KV}
    v_mov_b32 v{t}, 0xff800000
    {lm}:
    buffer_load_dwordx4 {vr(KF,4)}, v{v16}, {sr(rws,4)}, s{skv} offen
    buffer_load_dwordx4 {vr(KF+4,4)}, v{v16}, {sr(rws,4)}, s{skv} offen offset:1024
    s_waitcnt vmcnt(0)
    v_mfma_f32_32x32x16_bf16 {vr(S0,16)}, {vr(KF,4)}, {vr(Q,4)}, 0
    v_mfma_f32_32x32x16_bf16 {vr(S0,16)}, {vr(KF+4,4)}, {vr(Q+4,4)}, {vr(S0,16)}
    s_nop 15
    s_nop 3
    """)
    for i in range(0, 16, 2): k.e(f"v_max3_f32 v{t}, v{t}, v{S0+i}, v{S0+i+1}")
    k.e(f"""
    s_add_u32 s{skv}, s{skv}, 4096
    s_cmp_lt_u32 s{skv}, {KV+262144}
    s_cbranch_scc1 {lm}
    """)
    finish_max()
    k.e(f"s_mov_b32 s{skv}, {KV}")
    k.e("\n".join(dma_kv(98304) + dma_kv(131072)))
    k.e(f"s_branch {lstart}")
    k.e(f"{lout}:")
    so = k.s()
    k.e(f"""
    v_rcp_f32 v{t}, v{L}
    s_lshl_b32 s{so}, s{tb}, 18
    s_lshl_b32 s3, s{hp}, 14
    s_add_u32 s{so}, s{so}, s3
    s_lshl_b32 s3, s{hd}, 13
    s_add_u32 s{so}, s{so}, s3
    s_add_u32 s{so}, s{so}, {OO}
    """)
    for i in range(16): k.e(f"v_mul_f32 v{O+i}, v{O+i}, v{t}")
    for sp in range(2):
        for u in range(2):
            jj = sp + 2*u
            k.e(f"v_cvt_pk_bf16_f32 v{Pp+4*sp+2*u}, v{O+4*jj}, v{O+4*jj+1}")
            k.e(f"v_cvt_pk_bf16_f32 v{Pp+4*sp+2*u+1}, v{O+4*jj+2}, v{O+4*jj+3}")
    for sp in range(2):
        k.e(f"buffer_store_dwordx4 {vr(Pp+4*sp,4)}, v{vB0}, {sr(rws,4)}, s{so} offen offset:{sp*512}")
    finish(k)
    return k

HEADER = open("sequential_preLN__grouped_kv_mqa__mixer_gmlp__prompt.s.ref").read().split("; Override launch")[0]

if __name__ == "__main__":
    import gemms
    kerns = gemms.all_kernels()
    out = sys.argv[1] if len(sys.argv) > 1 else "sequential_preLN__grouped_kv_mqa__mixer_gmlp__prompt.s"
    open(out, "w").write(assemble_file(HEADER, kerns))
    for k in kerns: print(k.name, "vgpr", k.nv, "sgpr", k.ns, "lds", k.lds, "lines", len(k.L))
```

```python
import sys
from gen import *
import gemms
def k_empty():
    k = Kern("empty_kernel", 256, 256, 0)
    k.e("s_endpgm")
    return k
kerns = gemms.all_kernels()
e = k_empty()
n = int(sys.argv[2])
kerns = kerns[:4] + [e]*n + kerns[4:]
open(sys.argv[1], "w").write(assemble_file(HEADER, kerns))
```

```python
import struct

def f2u(x):
    return struct.unpack("<I", struct.pack("<f", x))[0]

STAMP = [False]
class Kern:
    def __init__(self, name, grid, block, lds):
        self.name = name; self.grid = grid; self.block = block; self.lds = lds
        self.L = []
        self.nv = 1
        self.ns = 4
        self.na = 0
        self.uid = 0
    def e(self, s):
        for ln in s.strip().split("\n"):
            ln = ln.strip()
            if not ln: continue
            if ln.endswith(":"): self.L.append(ln)
            else: self.L.append("    " + ln)
    def c(self, s): self.L.append("    ; " + s)
    def lab(self, base):
        self.uid += 1
        return f"L_{self.name}_{base}_{self.uid}"
    def v(self, n=1, al=None):
        if al is None: al = 1 if n == 1 else (2 if n < 4 else 4)
        b = (self.nv + al - 1) // al * al
        self.nv = b + n
        assert self.nv <= 256, f"{self.name}: vgpr overflow"
        return b
    def s(self, n=1, al=None):
        if al is None: al = 1 if n == 1 else (2 if n < 4 else 4)
        b = (self.ns + al - 1) // al * al
        self.ns = b + n
        assert self.ns <= 100, f"{self.name}: sgpr overflow"
        return b
    def launch_line(self):
        return f"; @launch kernel={self.name} grid=({self.grid},1,1) block=({self.block},1,1) lds={self.lds}"
    def text(self):
        o = [f".globl {self.name}", ".p2align 8", f".type {self.name},@function", f"{self.name}:"]
        o += self.L
        return "\n".join(o)
    def desc(self):
        nv = max(self.nv, 8)
        acc = (nv + 3) // 4 * 4
        tot = acc + self.na if self.na else nv
        return "\n".join([
            ".p2align 6",
            f".amdhsa_kernel {self.name}",
            f"  .amdhsa_next_free_vgpr {tot}",
            f"  .amdhsa_next_free_sgpr {max(self.ns, 16)}",
            f"  .amdhsa_accum_offset {acc}",
            "  .amdhsa_group_segment_fixed_size 0",
            "  .amdhsa_kernarg_size 104",
            "  .amdhsa_user_sgpr_count 2",
            "  .amdhsa_user_sgpr_kernarg_segment_ptr 1",
            "  .amdhsa_system_sgpr_workgroup_id_x 1",
            ".end_amdhsa_kernel"])
    def stamp_at(self, idx, real=False):
        if not STAMP[0]: return
        assert idx < 7
        op = "s_memrealtime" if real else "s_memtime"
        self.e(f"{op} s[{82+2*idx}:{82+2*idx+1}]")
    def stamp_flush(self, kidx):
        if not STAMP[0]: return
        assert self.ns <= 82
        skip = self.lab("st")
        self.e(f'''
        s_waitcnt vmcnt(0)
        s_memtime s[96:97]
        s_memrealtime s[98:99]
        s_cmp_lg_u32 s{self.sw}, 0
        s_cbranch_scc1 {skip}
        s_load_dwordx2 s[8:9], s[0:1], 96
        s_waitcnt lgkmcnt(0)
        s_add_u32 s8, s8, {0x3000000 + kidx*0x10000}
        s_addc_u32 s9, s9, 0
        s_mov_b32 s10, 0x10000
        s_mov_b32 s11, 0x20000
        s_mov_b64 exec, 1
        s_lshl_b32 s3, s2, 7
        v_mov_b32 v1, s3
        ''')
        for i in range(13):
            if i < 7: r = 82 + 2*i
            elif i >= 11: r = 96 + 2*(i-11)
            else: r = None
            if r is None: self.e(f"v_mov_b32 v2, 0\nv_mov_b32 v3, 0")
            else: self.e(f"v_mov_b32 v2, s{r}\nv_mov_b32 v3, s{r+1}")
            self.e(f"buffer_store_dwordx2 v[2:3], v1, s[8:11], 0 offen offset:{8*i}\ns_nop 1")
        self.e(f"{skip}:")
        self.ns = 100
    def srd(self, ptr, size, add=None):
        d = self.s(4)
        if add is None:
            self.e(f"s_mov_b32 s{d}, s{ptr}\ns_mov_b32 s{d+1}, s{ptr+1}")
        else:
            self.e(f"s_add_u32 s{d}, s{ptr}, {add}\ns_addc_u32 s{d+1}, s{ptr+1}, 0")
        self.e(f"s_mov_b32 s{d+2}, {size}\ns_mov_b32 s{d+3}, 0x20000")
        return d

def vr(b, n):
    return f"v{b}" if n == 1 else f"v[{b}:{b+n-1}]"
def sr(b, n):
    return f"s{b}" if n == 1 else f"s[{b}:{b+n-1}]"

def interleave(main, fill, start=0, end=None):
    if end is None: end = len(main)
    n = end - start
    out = []
    k = 0
    for i, m in enumerate(main):
        out.append(m)
        if start <= i < end:
            tgt = (len(fill) * (i - start + 1) + n - 1) // n
            while k < min(tgt, len(fill)):
                out.append(fill[k]); k += 1
    out += fill[k:]
    return out

def assemble_file(header, kerns):
    o = [header.rstrip()]
    for k in kerns: o.append(k.launch_line())
    o.append('.amdgcn_target "amdgcn-amd-amdhsa--gfx950"')
    o.append(".text")
    seen = []
    for k in kerns:
        if k.name in seen: continue
        seen.append(k.name)
        o.append(k.text())
    o.append('.section .rodata,"a"')
    seen = []
    for k in kerns:
        if k.name in seen: continue
        seen.append(k.name)
        o.append(k.desc())
    return "\n".join(o) + "\n"
```

```python
from asmlib import *
from gen import *
import gen

def stf(name):
    return {0: "", 1: " sc1", 2: " nt", 3: " sc0 sc1"}[gen.OPT.get("st_" + name, gen.OPT.get("st", 0))]

class Op:
    def ring(self, k, base, sz, n):
        self.rbase, self.rsz, self.rn = base, sz, n
        self.sp = k.s()
        k.e(f"s_mov_b32 s{self.sp}, {base}")
    def adv(self):
        s = self.sp
        return [f"s_add_u32 s{s}, s{s}, {self.rsz}", f"s_cmp_eq_u32 s{s}, {self.rbase+self.rn*self.rsz}", f"s_cselect_b32 s{s}, {self.rbase}, s{s}"]

def op_linear(k, G, ring, nper, srd, so, step, nfrag, sub_stride, first_frag_expr, half=False, uneven=False):
    o = Op(); o.ring(k, *ring); o.ndma = nper; o.nfrag = nfrag
    vd, sm = G.lv(), k.s()
    def lsetup():
        k.e(f"s_mul_i32 s{sm}, s{G.lw}, {nper*1024}")
        if uneven: k.e(f"s_cmp_eq_u32 s{G.lw}, 3\ns_cselect_b32 s{sm}, 11264, s{sm}")
        k.e(f"v_add_u32 v{vd}, s{sm}, v{G.v16}")
    o.lsetup = lsetup
    o.uneven = uneven
    def dma():
        r = [f"s_add_u32 m0, s{o.sp}, s{sm}", "s_nop 0"]
        for j in range(o.ndma):
            r.append(f"buffer_load_dwordx4 v{vd}, {sr(srd,4)}, s{so} offen offset:{j*1024} lds")
        r.append(f"s_add_u32 s{so}, s{so}, {step}")
        return r + o.adv()
    o.dma = dma
    def late():
        st, cur = k.v(), k.v()
        k.e(first_frag_expr)
        if half: k.e(f"v_lshlrev_b32 v{st}, 3, v{k.vl}\nv_add_u32 v{st}, s3, v{st}")
        else: k.e(f"v_add_u32 v{st}, s3, v{G.v16}")
        o.bases = [(cur, st)]
        if half:
            o.read = lambda sub, i, dst: [f"ds_read_b64 {vr(dst+2*q,2)}, v{cur} offset:{(2*sub+q)*4096+i*512}" for q in range(2)]
        else:
            o.read = lambda sub, i, dst: [f"ds_read_b128 {vr(dst,4)}, v{cur} offset:{sub*sub_stride+i*1024}"]
    o.late = late
    return o

def op_w(k, G, ring, RS, ldw, srd, so, nfrag, t0_sgpr):
    o = Op(); o.ring(k, *ring); o.nfrag = nfrag
    CPR = RS // 16
    n = CPR // 4
    o.ndma = n
    vd = [G.lv() for _ in range(n)]
    sm = k.s()
    sm2 = k.s() if n > 4 else None
    ci, row, t = G.t0, G.t1, G.t2
    def lsetup():
        k.e(f"s_mul_i32 s{sm}, s{G.lw}, {n*64}")
        for j in range(n):
            k.e(f"v_add_u32 v{ci}, s{sm}, v{k.vl}")
            if j: k.e(f"v_add_u32 v{ci}, {j*64}, v{ci}")
            if CPR == 8:
                k.e(f"""
                v_lshrrev_b32 v{row}, 3, v{ci}
                v_and_b32 v{ci}, 7, v{ci}
                v_bfe_u32 v{t}, v{row}, 1, 2
                """)
            else:
                assert CPR == 28
                k.e(f"""
                v_mul_u32_u24 v{row}, 2341, v{ci}
                v_lshrrev_b32 v{row}, 16, v{row}
                v_mul_u32_u24 v{t}, 28, v{row}
                v_sub_u32 v{ci}, v{ci}, v{t}
                v_bfe_u32 v{t}, v{row}, 2, 1
                """)
            k.e(f"""
            v_lshlrev_b32 v{t}, 1, v{t}
            v_xor_b32 v{ci}, v{ci}, v{t}
            v_mul_u32_u24 v{row}, {ldw}, v{row}
            v_lshl_add_u32 v{vd[j]}, v{ci}, 4, v{row}
            """)
            if j % 4: k.e(f"v_subrev_u32 v{vd[j]}, {(j%4)*1024}, v{vd[j]}")
        k.e(f"s_lshl_b32 s{sm}, s{sm}, 4")
        if n > 4: k.e(f"s_add_u32 s{sm2}, s{sm}, 4096")
    o.lsetup = lsetup
    def dma():
        r = []
        for j in range(n):
            if j % 4 == 0:
                r += [f"s_add_u32 m0, s{o.sp}, s{sm if j == 0 else sm2}", "s_nop 0"]
            r.append(f"buffer_load_dwordx4 v{vd[j]}, {sr(srd,4)}, s{so} offen offset:{(j%4)*1024} lds")
        r.append(f"s_add_u32 s{so}, s{so}, {64*ldw}")
        return r + o.adv()
    o.dma = dma
    def late():
        sa, ca, sb, cb = k.v(), k.v(), k.v(), k.v()
        k.e(f"""
        v_lshrrev_b32 v{t}, 2, v{k.vl}
        v_mul_u32_u24 v{row}, {RS}, v{t}
        v_and_b32 v{t}, 3, v{k.vl}
        v_lshl_add_u32 v{row}, v{t}, 3, v{row}
        """)
        if CPR == 8:
            assert nfrag == 2
            k.e(f"""
            v_bfe_u32 v{t}, v{k.vl}, 3, 2
            v_xor_b32 v{t}, s{t0_sgpr}, v{t}
            v_lshl_add_u32 v{sa}, v{t}, 5, v{row}
            v_xor_b32 v{t}, 1, v{t}
            v_lshl_add_u32 v{sb}, v{t}, 5, v{row}
            """)
            o.read = lambda sub, i, dst: [f"ds_read_b64_tr_b16 {vr(dst+2*q,2)}, v{ca if i == 0 else cb} offset:{(32*sub+16*q)*RS}" for q in range(2)]
        else:
            k.e(f"""
            v_bfe_u32 v{t}, v{k.vl}, 4, 1
            v_xor_b32 v{ci}, s{t0_sgpr}, v{t}
            v_lshl_add_u32 v{sa}, v{ci}, 5, v{row}
            s_add_u32 s3, s{t0_sgpr}, 1
            v_xor_b32 v{ci}, s3, v{t}
            v_subrev_u32 v{ci}, 1, v{ci}
            v_lshl_add_u32 v{sb}, v{ci}, 5, v{row}
            """)
            o.read = lambda sub, i, dst: [f"ds_read_b64_tr_b16 {vr(dst+2*q,2)}, v{ca if i % 2 == 0 else cb} offset:{(32*sub+16*q)*RS+32*i}" for q in range(2)]
        o.bases = [(ca, sa), (cb, sb)]
    o.late = late
    return o

def rowimg_dma_offsets(k, G, ld, vd, sw):
    t, t2, row = G.t0, G.t1, G.t2
    for j in range(4):
        k.e(f"""
        v_lshrrev_b32 v{row}, 3, v{k.vl}
        s_lshl_b32 s3, s{sw}, 5
        s_add_u32 s3, s3, {8*j}
        v_add_u32 v{row}, s3, v{row}
        v_bfe_u32 v{t}, v{row}, 1, 3
        v_and_b32 v{t2}, 7, v{k.vl}
        v_xor_b32 v{t}, v{t}, v{t2}
        v_mul_u32_u24 v{row}, {ld}, v{row}
        v_lshl_add_u32 v{vd[j]}, v{t}, 4, v{row}
        """)
        if j: k.e(f"v_subrev_u32 v{vd[j]}, {j*1024}, v{vd[j]}")

def rowimg_base0(k, G, dst, row0_expr, base):
    t, t2 = G.t0, G.t1
    k.e(row0_expr)
    k.e(f"""
    s_lshl_b32 s3, s3, 7
    s_add_u32 s3, s3, {base}
    v_and_b32 v{t}, 15, v{k.vl}
    v_lshlrev_b32 v{dst}, 7, v{t}
    v_lshrrev_b32 v{t}, 1, v{t}
    v_lshrrev_b32 v{t2}, 5, v{k.vl}
    v_xor_b32 v{t}, v{t}, v{t2}
    v_lshl_add_u32 v{dst}, v{t}, 4, v{dst}
    v_bfe_u32 v{t}, v{k.vl}, 4, 1
    v_lshl_add_u32 v{dst}, v{t}, 3, v{dst}
    v_add_u32 v{dst}, s3, v{dst}
    """)

def op_r(k, G, ring, ld, srd, so, nfrag):
    o = Op(); o.ring(k, *ring); o.nfrag = nfrag; o.ndma = 4
    vd = [G.lv() for _ in range(4)]
    sm = k.s()
    def lsetup():
        rowimg_dma_offsets(k, G, ld, vd, G.lw)
        k.e(f"s_lshl_b32 s{sm}, s{G.lw}, 12")
    o.lsetup = lsetup
    def dma():
        r = [f"s_add_u32 m0, s{o.sp}, s{sm}", "s_nop 0"]
        for j in range(4):
            r.append(f"buffer_load_dwordx4 v{vd[j]}, {sr(srd,4)}, s{so} offen offset:{j*1024} lds")
        r.append(f"s_add_u32 s{so}, s{so}, 128")
        return r + o.adv()
    o.dma = dma
    def late():
        st = [k.v() for _ in range(4)]; cur = [k.v() for _ in range(4)]
        rowimg_base0(k, G, st[0], f"s_lshl_b32 s3, s{k.sw}, 5", 0)
        for x in range(1, 4): k.e(f"v_xor_b32 v{st[x]}, {x*32}, v{st[0]}")
        o.bases = list(zip(cur, st))
        o.read = lambda sub, i, dst: [f"ds_read_b64 {vr(dst+2*q,2)}, v{cur[2*sub+q]} offset:{i*2048}" for q in range(2)]
    o.late = late
    return o

class Gemm:
    LV0 = 16
    def __init__(self, k, NS, NSTG):
        self.k = k; self.NS = NS; self.NSTG = NSTG
        self.cnt, self.lw = k.s(), k.s()
        self.v16 = k.v(); self.t0, self.t1, self.t2 = k.v(), k.v(), k.v()
        self.nlv = self.LV0
        self.srdcode = []
        k.e(f"v_lshlrev_b32 v{self.v16}, 4, v{k.vl}\ns_and_b32 s{self.lw}, s{k.sw}, 3")
    def srd(self, ptr, size):
        d = self.k.s(4)
        self.srdcode += [f"s_mov_b32 s{d}, s{ptr}", f"s_mov_b32 s{d+1}, s{ptr+1}"]
        self.k.e(f"s_mov_b32 s{d+2}, {size}\ns_mov_b32 s{d+3}, 0x20000")
        return d
    def emit_srds(self):
        self.k.e("s_waitcnt lgkmcnt(0)\n" + "\n".join(self.srdcode))
    def lv(self, n=1):
        al = 1 if n == 1 else (2 if n < 4 else 4)
        b = (self.nlv + al - 1)//al*al; self.nlv = b + n
        return b
    def dma(self):
        r = []
        for o in self.ops: r += o.dma()
        return r
    def split(self, opA, opB):
        k = self.k
        self.A, self.B = opA, opB
        self.ops = [opB, opA]
        assert k.nv <= self.LV0
        self.lc = k.lab("comp")
        k.e(f"s_cmp_lt_u32 s{k.sw}, 4\ns_cbranch_scc1 {self.lc}")
    def join(self):
        k = self.k
        k.e(f"s_endpgm\n{self.lc}:")
        self.A.late(); self.B.late()
        na, nb = self.A.nfrag, self.B.nfrag
        self.acc = k.v(4*na*nb)
        self.FA = [k.v(4*na), k.v(4*na)]
        self.FB = [k.v(4*nb), k.v(4*nb)]
        k.nv = max(k.nv, self.nlv)
    def loader(self, opA, opB, tail=None, tail_n=0, post=None):
        k = self.k; NS, NSTG = self.NS, self.NSTG
        self.split(opA, opB)
        for o in self.ops: o.lsetup()
        unev = [o for o in self.ops if getattr(o, "uneven", False)]
        lB, lJ = k.lab("clsB"), k.lab("clsJ")
        if unev: k.e(f"s_cmp_ge_u32 s{self.lw}, 2")
        self.emit_srds()
        if unev: k.e(f"s_cbranch_scc1 {lB}")
        for cls in range(2 if unev else 1):
            if cls == 1:
                k.e(f"s_branch {lJ}\n{lB}:")
                for o in unev: o.ndma -= 1
            D = opA.ndma + opB.ndma
            for i in range(NS-1): k.e("\n".join(self.dma()))
            k.e(f"s_waitcnt vmcnt({(NS-2)*D})\ns_barrier")
            k.e("\n".join(self.dma()))
            lab = k.lab("lloop")
            k.e(f"s_mov_b32 s{self.cnt}, {NSTG-NS}\n{lab}:")
            k.e(f"s_waitcnt vmcnt({(NS-2)*D})\ns_barrier")
            k.e("\n".join(self.dma()))
            k.e(f"s_sub_u32 s{self.cnt}, s{self.cnt}, 1\ns_cmp_lg_u32 s{self.cnt}, 0\ns_nop 7\ns_cbranch_scc1 {lab}")
            if tail: tail()
            for p in range(NS-1):
                k.e(f"s_waitcnt vmcnt({(NS-2-p)*D + tail_n})\ns_barrier")
        if unev: k.e(f"{lJ}:")
        if post: post()
        self.join()
    def zero(self):
        for i in range(4*self.A.nfrag*self.B.nfrag): self.k.e(f"v_mov_b32 v{self.acc+i}, 0")
    def a(self, i, j): return self.acc + 4*(i*self.B.nfrag + j)
    def reads(self, sub, st):
        ra = [self.A.read(sub, i, self.FA[st] + 4*i) for i in range(self.A.nfrag)]
        rb = [self.B.read(sub, i, self.FB[st] + 4*i) for i in range(self.B.nfrag)]
        r = []
        for x in rb + ra: r += x
        return r
    def mfmas(self, st, swap):
        r = []
        for i in range(self.A.nfrag):
            for j in range(self.B.nfrag):
                a, b = vr(self.FA[st]+4*i, 4), vr(self.FB[st]+4*j, 4)
                if swap: a, b = b, a
                r.append(f"v_mfma_f32_16x16x32_bf16 {vr(self.a(i,j),4)}, {a}, {b}, {vr(self.a(i,j),4)}")
        return r
    def setbases(self):
        r = []
        for o in self.ops:
            for cur, st in o.bases: r.append(f"v_add_u32 v{cur}, s{o.sp}, v{st}")
            r += o.adv()
        return r
    def first(self):
        k = self.k
        k.e("\n".join(self.setbases()))
        k.stamp_at(2)
        k.e(f"s_barrier")
        k.stamp_at(3)
        k.e("\n".join(self.reads(0, 0)))
    def iteration(self, swap, last=False, tailfill=[]):
        k = self.k
        m0 = self.mfmas(0, swap); m1 = self.mfmas(1, swap)
        n = len(m0)
        k.e("s_waitcnt lgkmcnt(0)")
        f = self.reads(1, 1) + ([] if last else self.setbases())
        k.e("\n".join(interleave(m0, f, 0, max(1, (n*3)//4))))
        if last:
            k.e("s_waitcnt lgkmcnt(0)")
            k.e("\n".join(m1))
            return
        k.e(f"s_waitcnt lgkmcnt(0)\ns_barrier")
        rd = self.reads(0, 0)
        k.e("\n".join(interleave(m1, rd + tailfill, 0, max(1, (n*3)//4))))
    def loop(self, swap, extra=None, at=3):
        k = self.k
        lab = k.lab("loop")
        k.e(f"s_mov_b32 s{self.cnt}, {self.NSTG-1}\n{lab}:")
        if extra:
            ls = k.lab("noextra"); lx = k.lab("extra")
            k.e(f"s_cmp_eq_u32 s{self.cnt}, {at}\ns_cbranch_scc1 {lx}\n{ls}:")
            k.outofline = getattr(k, "outofline", []) + [f"{lx}:"] + extra + [f"s_branch {ls}"]
        self.iteration(swap, tailfill=[f"s_sub_u32 s{self.cnt}, s{self.cnt}, 1", f"s_cmp_lg_u32 s{self.cnt}, 0"])
        k.e(f"s_cbranch_scc1 {lab}")
        k.stamp_at(4)
        self.iteration(swap, last=True)
        k.stamp_at(5)

def unpack2(k, src, lo, hi):
    k.e(f"v_lshlrev_b32 v{lo}, 16, v{src}\nv_and_b32 v{hi}, 0xffff0000, v{src}")

def k_oproj():
    NS = 4
    XT = NS*24576; ST = XT + 16384
    k = Kern("oproj_kernel", 256, 512, ST + 8192)
    P = begin(k, 256, ["x", "wo", "ws"])
    tb, jn = tilemap(k, 1, 4)
    G = Gemm(k, NS, 16)
    th, chh, sob, sow, t0s, sxo = k.s(), k.s(), k.s(), k.s(), k.s(), k.s()
    k.e(f"""
    s_lshr_b32 s{th}, s{k.sw}, 1
    s_and_b32 s{chh}, s{k.sw}, 1
    s_lshl_b32 s{t0s}, s{chh}, 1
    s_lshl_b32 s{sob}, s{tb}, 18
    s_add_u32 s{sob}, s{sob}, {OO}
    s_lshl_b32 s{sow}, s{jn}, 7
    s_lshl_b32 s{sxo}, s{tb}, 18
    s_add_u32 s{sxo}, s{sxo}, s{sow}
    """)
    rws = G.srd(P["ws"], Z1); rw = G.srd(P["wo"], 1024*1024*2); rx = G.srd(P["x"], 2048*1024*2)
    B = op_linear(k, G, (0, 16384, NS), 4, rws, sob, 16384, 4, 8192, f"s_lshl_b32 s3, s{th}, 12")
    A = op_w(k, G, (NS*16384, 8192, NS), 128, 2048, rw, sow, 2, t0s)
    vdx = [G.lv() for _ in range(4)]
    def tail():
        rowimg_dma_offsets(k, G, 2048, vdx, G.lw)
        k.e("\n".join([f"s_lshl_b32 s3, s{G.lw}, 12", f"s_add_u32 m0, s3, {XT}", "s_nop 0"] +
            [f"buffer_load_dwordx4 v{vdx[j]}, {sr(rx,4)}, s{sxo} offen offset:{j*1024} lds" for j in range(4)]))
    G.loader(A, B, tail, 4, lambda: k.e("s_waitcnt vmcnt(0)\ns_barrier"))
    G.zero()
    vx0, vx1, vs = k.v(), k.v(), k.v()
    so = k.s()
    rowimg_base0(k, G, vx0, f"s_lshl_b32 s3, s{th}, 6", XT)
    k.e(f"""
    s_lshl_b32 s3, s{chh}, 6
    v_xor_b32 v{vx0}, s3, v{vx0}
    v_xor_b32 v{vx1}, 32, v{vx0}
    v_and_b32 v{G.t0}, 15, v{k.vl}
    v_lshlrev_b32 v{vs}, 6, v{G.t0}
    v_lshrrev_b32 v{G.t0}, 4, v{k.vl}
    v_lshl_add_u32 v{vs}, v{G.t0}, 3, v{vs}
    s_lshl_b32 s3, s{th}, 12
    s_lshl_b32 s{so}, s{chh}, 5
    s_add_u32 s3, s3, s{so}
    s_add_u32 s3, s3, {ST}
    v_add_u32 v{vs}, s3, v{vs}
    s_lshl_b32 s{so}, s{tb}, 18
    s_lshl_b32 s3, s{jn}, 14
    s_add_u32 s{so}, s{so}, s3
    s_lshl_b32 s3, s{chh}, 13
    s_add_u32 s{so}, s{so}, s3
    s_lshl_b32 s3, s{th}, 12
    s_add_u32 s{so}, s{so}, s3
    s_add_u32 s{so}, s{so}, {HH}
    """)
    G.emit_srds()
    G.first()
    G.loop(False)
    k.e("s_barrier")
    XR = G.FB[0]
    for ni in range(4):
        k.e(f"ds_read_b64 {vr(XR+4*ni,2)}, v{vx0} offset:{ni*2048}\nds_read_b64 {vr(XR+4*ni+2,2)}, v{vx1} offset:{ni*2048}")
    k.e("s_waitcnt lgkmcnt(0)")
    OUT = G.FB[1]; SS = G.FA[0]
    for ni in range(4):
        s1, s2 = SS+2*ni, SS+2*ni+1
        for mi in range(2):
            a = G.a(mi, ni)
            for d in range(2):
                unpack2(k, XR+4*ni+2*mi+d, G.t0, G.t1)
                k.e(f"v_add_f32 v{a+2*d}, v{a+2*d}, v{G.t0}\nv_add_f32 v{a+2*d+1}, v{a+2*d+1}, v{G.t1}")
                k.e(f"v_cvt_pk_bf16_f32 v{OUT+4*ni+2*mi+d}, v{a+2*d}, v{a+2*d+1}")
        k.e(f"buffer_store_dwordx4 {vr(OUT+4*ni,4)}, v{G.v16}, {sr(rws,4)}, s{so} offen offset:{ni*1024}{stf('h')}")
    for ni in range(4):
        s1, s2 = SS+2*ni, SS+2*ni+1
        for mi in range(2):
            a = G.a(mi, ni)
            for i in range(4):
                if mi == 0 and i == 0: k.e(f"v_mov_b32 v{s1}, v{a}\nv_mul_f32 v{s2}, v{a}, v{a}")
                else: k.e(f"v_add_f32 v{s1}, v{s1}, v{a+i}\nv_fmac_f32 v{s2}, v{a+i}, v{a+i}")
        k.e(f"ds_write_b64 v{vs}, {vr(s1,2)} offset:{ni*1024}")
    k.e(f"""
    s_cmp_ge_u32 s{k.sw}, 2
    v_lshlrev_b32 v{G.t0}, 6, v0
    v_add_u32 v{G.t0}, {ST}, v{G.t0}
    s_waitcnt lgkmcnt(0)
    s_barrier
    s_cbranch_scc1 {k.end}
    """)
    for i in range(4): k.e(f"ds_read_b128 {vr(XR+4*i,4)}, v{G.t0} offset:{16*i}")
    k.e(f"""
    s_lshl_b32 s{so}, s{tb}, 14
    s_lshl_b32 s3, s{jn}, 10
    s_add_u32 s{so}, s{so}, s3
    s_add_u32 s{so}, s{so}, {HST}
    v_lshlrev_b32 v{G.t0}, 3, v0
    s_waitcnt lgkmcnt(0)
    """)
    for st in (8, 4, 2):
        for i in range(0, st, 2): k.e(f"v_pk_add_f32 {vr(XR+i,2)}, {vr(XR+i,2)}, {vr(XR+st+i,2)}")
    k.e(f"buffer_store_dwordx2 {vr(XR,2)}, v{G.t0}, {sr(rws,4)}, s{so} offen")
    finish(k)
    return k

def var_eps(k, s1, s2, n):
    k.e(f"""
    v_mul_f32 v{s1}, {hex(f2u(1.0/n))}, v{s1}
    v_mul_f32 v{s2}, {hex(f2u(1.0/n))}, v{s2}
    v_fma_f32 v{s2}, -v{s1}, v{s1}, v{s2}
    v_max_f32 v{s2}, 0, v{s2}
    v_add_f32 v{s2}, {hex(f2u(1e-5))}, v{s2}
    """)

def k_win():
    NS = 3
    TQ = NS*45056
    TA = TQ + 2048
    CL = TA + 2048
    ZS = CL + 1024
    ZT = ZS + 2048
    k = Kern("win_kernel", 256, 512, ZT + 1024)
    P = begin(k, 256, ["w_in", "ws"])
    tb, jn = tilemap(k, 3, 2)
    G = Gemm(k, NS, 16)
    th, fh, sob, sow, t0s, so = k.s(), k.s(), k.s(), k.s(), k.s(), k.s()
    k.e(f"""
    s_lshr_b32 s{th}, s{k.sw}, 1
    s_and_b32 s{fh}, s{k.sw}, 1
    s_mul_i32 s{t0s}, s{fh}, 7
    s_lshl_b32 s{sob}, s{tb}, 18
    s_add_u32 s{sob}, s{sob}, {HH}
    s_mul_i32 s{sow}, s{jn}, 448
    """)
    rws = G.srd(P["ws"], UU); rw = G.srd(P["w_in"], 1024*3584*2)
    B = op_linear(k, G, (0, 16384, NS), 4, rws, sob, 16384, 4, 8192, f"s_lshl_b32 s3, s{th}, 12")
    A = op_w(k, G, (NS*16384, 28672, NS), 448, 7168, rw, sow, 7, t0s)
    c0 = -2.0*0.7978845608028654*LOG2E; c1 = c0*0.044715
    TL = G.lv(32); v8 = G.lv()
    def tail():
        l2, l3 = k.lab("cs"), k.lab("tj")
        k.e(f"""
        s_cmp_ge_u32 s{G.lw}, 2
        v_and_b32 v{v8}, 127, v0
        v_lshlrev_b32 v{v8}, 3, v{v8}
        s_cbranch_scc1 {l2}
        s_lshl_b32 s{so}, s{tb}, 14
        s_add_u32 s{so}, s{so}, {HST}
        """)
        for p in range(16):
            k.e(f"buffer_load_dwordx2 {vr(TL+2*p,2)}, v{v8}, {sr(rws,4)}, s{so} offen offset:{(p%4)*1024}")
            if p % 4 == 3 and p < 15: k.e(f"s_add_u32 s{so}, s{so}, 4096")
        k.e(f"""
        s_branch {l3}
        {l2}:
        s_mul_i32 s{so}, s{jn}, 896
        s_add_u32 s{so}, s{so}, {CS}
        """)
        for p in range(8):
            k.e(f"buffer_load_dword v{TL+2*p}, v{v8}, {sr(rws,4)}, s{so} offen")
            k.e(f"buffer_load_dword v{TL+2*p+1}, v{v8}, {sr(rws,4)}, s{so} offen offset:4")
            if p < 7: k.e(f"s_add_u32 s{so}, s{so}, {3584*4}")
        for p in range(16, 32): k.e(f"v_mov_b32 v{TL+p}, 0")
        k.e(f"{l3}:")
    def post():
        k.e(f"s_cmp_ge_u32 s{G.lw}, 2\ns_waitcnt vmcnt(0)")
        for st in (16, 8, 4, 2):
            for i in range(0, st, 2): k.e(f"v_pk_add_f32 {vr(TL+i,2)}, {vr(TL+i,2)}, {vr(TL+st+i,2)}")
        l4, l5 = k.lab("cw"), k.lab("tw")
        k.e(f"s_cbranch_scc1 {l4}")
        var_eps(k, TL, TL+1, 1024)
        q = TL + 4
        k.e(f"""
        v_rsq_f32 v{TL+2}, v{TL+1}
        v_sub_f32 v{q}, 0, v{TL}
        v_lshlrev_b32 v{G.t0}, 1, v{v8}
        v_mul_f32 v{q+3}, v{TL+1}, v{TL+2}
        v_mul_f32 v{q+2}, {hex(f2u(c0))}, v{TL+2}
        v_mul_f32 v{q+1}, v{TL+2}, v{TL+2}
        v_mul_f32 v{q+1}, v{q+1}, v{TL+2}
        v_mul_f32 v{q+1}, {hex(f2u(c1))}, v{q+1}
        v_add_u32 v{G.t0}, {TQ}, v{G.t0}
        v_lshrrev_b32 v{G.t1}, 1, v{v8}
        v_add_u32 v{G.t1}, {TA}, v{G.t1}
        ds_write_b128 v{G.t0}, {vr(q,4)}
        ds_write_b32 v{G.t1}, v{q}
        ds_write_b32 v{G.t1}, v{q+1} offset:512
        ds_write_b32 v{G.t1}, v{q+2} offset:1024
        ds_write_b32 v{G.t1}, v{q+3} offset:1536
        s_branch {l5}
        {l4}:
        v_add_u32 v{G.t0}, {CL}, v{v8}
        ds_write_b64 v{G.t0}, {vr(TL,2)}
        {l5}:
        s_waitcnt lgkmcnt(0)
        s_barrier
        s_cmp_lt_u32 s{jn}, 8
        s_cbranch_scc1 {k.end}x
        s_cmp_ge_u32 s{G.lw}, 2
        s_cbranch_scc1 {k.end}x
        s_lshl_b32 s{so}, s{tb}, 13
        s_add_u32 s{so}, s{so}, {ZST}
        s_add_u32 s{sob}, s{so}, 4096
        s_barrier
        """)
        lp = k.lab("poll")
        k.e(f"{lp}:")
        for p in range(8):
            k.e(f"buffer_load_dwordx2 {vr(TL+2*p,2)}, v{v8}, {sr(rws,4)}, s{so if p < 4 else sob} offen offset:{(p%4)*1024} sc1")
        k.e(f"""
        s_waitcnt vmcnt(0)
        v_max3_u32 v{G.t0}, v{TL+1}, v{TL+3}, v{TL+5}
        v_max3_u32 v{G.t0}, v{G.t0}, v{TL+7}, v{TL+9}
        v_max3_u32 v{G.t0}, v{G.t0}, v{TL+11}, v{TL+13}
        v_max_u32 v{G.t0}, v{G.t0}, v{TL+15}
        v_cmp_eq_u32 vcc, -1, v{G.t0}
        s_cbranch_vccnz {lp}
        """)
        for st in (8, 4, 2):
            for i in range(0, st, 2): k.e(f"v_pk_add_f32 {vr(TL+i,2)}, {vr(TL+i,2)}, {vr(TL+st+i,2)}")
        var_eps(k, TL, TL+1, 1792)
        k.e(f"""
        v_rsq_f32 v{TL+1}, v{TL+1}
        v_lshrrev_b32 v{G.t1}, 1, v{v8}
        v_add_u32 v{G.t1}, {ZT}, v{G.t1}
        v_mul_f32 v{TL}, v{TL}, v{TL+1}
        v_sub_f32 v{TL}, 0, v{TL}
        ds_write_b32 v{G.t1}, v{TL+1}
        ds_write_b32 v{G.t1}, v{TL} offset:512
        s_waitcnt lgkmcnt(0)
        s_barrier
        """)
    G.loader(A, B, tail, 16, post)
    G.zero()
    G.emit_srds()
    k.e(f"s_cmp_ge_u32 s{jn}, 8\ns_cselect_b32 s{so}, 1, 0")
    G.first()
    lz2 = k.lab("z2")
    k.e(f"s_cmp_eq_u32 s{so}, 1\ns_cbranch_scc1 {lz2}")
    X = k.v(32)
    OUTS = G.FA[1]; TMP = G.FA[1] + 16; vg, vrr = G.FA[1] + 24, G.FA[1] + 25
    def epi_common():
        k.e(f"""
        v_lshrrev_b32 v{vg}, 4, v{k.vl}
        v_lshlrev_b32 v{vg}, 4, v{vg}
        v_and_b32 v{vrr}, 15, v{k.vl}
        """)
    def gelu8(accs, cs, nmu, a3, a1, ir):
        prs = [(u, h) for u in range(2) for h in (0, 2)]
        def osel(sels):
            lo = [1 if s == "hi" else 0 for s in sels]; hi = [0 if s == "lo" else 1 for s in sels]
            return f"op_sel:{lo} op_sel_hi:{hi}".replace(" ", "").replace("op_sel_hi", " op_sel_hi")
        A_ = lambda u, h: vr(accs[u]+h, 2)
        T_ = lambda u, h: vr(TMP+4*u+h, 2)
        for u, h in prs:
            (o1, s1), (o2, s2) = cs(u, h), nmu(u, h)
            k.e(f"v_pk_fma_f32 {A_(u,h)}, {o1}, {o2}, {A_(u,h)} {osel([s1, s2, 'pair'])}")
        for u, h in prs: k.e(f"v_pk_mul_f32 {T_(u,h)}, {A_(u,h)}, {A_(u,h)}")
        for u, h in prs:
            (o1, s1), (o2, s2) = a3(u, h), a1(u, h)
            k.e(f"v_pk_fma_f32 {T_(u,h)}, {T_(u,h)}, {o1}, {o2} {osel(['pair', s1, s2])}")
        for u, h in prs: k.e(f"v_pk_mul_f32 {T_(u,h)}, {T_(u,h)}, {A_(u,h)}")
        for i in range(8): k.e(f"v_exp_f32 v{TMP+i}, v{TMP+i}")
        for u, h in prs:
            o1, s1 = ir(u, h)
            k.e(f"v_pk_fma_f32 {T_(u,h)}, {T_(u,h)}, {o1}, {o1} {osel(['pair', s1, s1])}")
        for i in range(8): k.e(f"v_rcp_f32 v{TMP+i}, v{TMP+i}")
        for u, h in prs: k.e(f"v_pk_mul_f32 {A_(u,h)}, {A_(u,h)}, {T_(u,h)}")
    G.loop(False)
    epi_common()
    CSV = G.FA[0]
    TK = G.FB[0]
    k.e(f"""
    s_mul_i32 s3, s{fh}, 448
    s_add_u32 s3, s3, {CL}
    v_add_u32 v{vg}, s3, v{vg}
    s_lshl_b32 s3, s{th}, 10
    s_add_u32 s3, s3, {TQ}
    v_lshl_add_u32 v{vrr}, v{vrr}, 4, s3
    s_barrier
    """)
    for ni in range(4): k.e(f"ds_read_b128 {vr(TK+4*ni,4)}, v{vrr} offset:{256*ni}")
    for mi in range(7): k.e(f"ds_read_b128 {vr(CSV+4*mi,4)}, v{vg} offset:{64*mi}")
    k.e(f"""
    s_lshl_b32 s{so}, s{tb}, 1
    s_add_u32 s{so}, s{so}, s{th}
    s_mul_i32 s{so}, s{so}, 224
    s_mul_i32 s3, s{jn}, 14
    s_add_u32 s{so}, s{so}, s3
    s_add_u32 s{so}, s{so}, s{t0s}
    s_lshl_b32 s{so}, s{so}, 10
    s_add_u32 s{so}, s{so}, {Z1}
    s_waitcnt lgkmcnt(0)
    """)
    oi = 0
    for np_ in range(2):
        for mi in range(7):
            o = OUTS + 4*(oi % 4); oi += 1
            accs = [G.a(mi, 2*np_), G.a(mi, 2*np_+1)]
            tk = lambda u: TK + 4*(2*np_+u)
            gelu8(accs, lambda u, h: (vr(CSV+4*mi+h, 2), "pair"), lambda u, h: (vr(tk(u), 2), "lo"), lambda u, h: (vr(tk(u), 2), "hi"),
                  lambda u, h: (vr(tk(u)+2, 2), "lo"), lambda u, h: (vr(tk(u)+2, 2), "hi"))
            for u in range(2):
                a = accs[u]
                k.e(f"v_cvt_pk_bf16_f32 v{o+2*u}, v{a}, v{a+1}\nv_cvt_pk_bf16_f32 v{o+2*u+1}, v{a+2}, v{a+3}")
            k.e(f"buffer_store_dwordx4 {vr(o,4)}, v{G.v16}, {sr(rws,4)}, s{so} offen offset:{(mi%4)*1024}{stf('z')}")
            if mi == 3: k.e(f"s_add_u32 s{so}, s{so}, 4096")
        if np_ == 0: k.e(f"s_add_u32 s{so}, s{so}, {112*1024-4096}")
    k.e(f"s_branch {k.end}")
    k.e(f"{lz2}:")
    G.loop(True)
    epi_common()
    TV = G.FB[0]
    assert G.FB[1] == G.FB[0] + 16
    CV = G.FA[0]
    S1, S2 = X, X + 16
    k.e(f"""
    s_lshl_b32 s3, s{th}, 8
    s_add_u32 s3, s3, {TA}
    v_add_u32 v{G.t0}, s3, v{vg}
    s_mul_i32 s3, s{fh}, 448
    s_add_u32 s3, s3, {CL}
    v_lshl_add_u32 v{vrr}, v{vrr}, 2, s3
    s_barrier
    """)
    def rdtok(kp):
        for q in range(4):
            for u in range(2): k.e(f"ds_read_b128 {vr(TV+8*q+4*u,4)}, v{G.t0} offset:{512*q+64*(2*kp+u)}")
    rdtok(0)
    for fi in range(7): k.e(f"ds_read_b32 v{CV+2*fi}, v{vrr} offset:{64*fi}")
    k.e(f"""
    s_sub_u32 s{so}, s{jn}, 8
    s_lshl_b32 s{so}, s{so}, 1
    s_add_u32 s{so}, s{so}, s{fh}
    s_lshl_b32 s{so}, s{so}, 5
    s_lshl_b32 s3, s{tb}, 1
    s_add_u32 s{so}, s{so}, s3
    s_add_u32 s{so}, s{so}, s{th}
    s_mul_i32 s{so}, s{so}, 14336
    s_add_u32 s{so}, s{so}, {Z2T}
    """)
    for i in range(32): k.e(f"v_mov_b32 v{X+i}, 0")
    for kp in range(2):
        if kp == 1: rdtok(1)
        k.e("s_waitcnt lgkmcnt(0)")
        for fi in range(7):
            accs = [G.a(fi, 2*kp), G.a(fi, 2*kp+1)]
            tv = lambda q: (lambda u, h: (vr(TV+8*q+4*u+h, 2), "pair"))
            gelu8(accs, lambda u, h: (vr(CV+2*fi, 2), "lo"), tv(0), tv(1), tv(2), tv(3))
            for u in range(2):
                a = accs[u]; ti = 2*kp + u
                for h in (0, 2):
                    k.e(f"v_pk_add_f32 {vr(S1+4*ti+h,2)}, {vr(S1+4*ti+h,2)}, {vr(a+h,2)}")
                    k.e(f"v_pk_fma_f32 {vr(S2+4*ti+h,2)}, {vr(a+h,2)}, {vr(a+h,2)}, {vr(S2+4*ti+h,2)}")
    k.e("s_nop 1")
    for i in range(16):
        k.e(f"v_add_f32_dpp v{S1+i}, v{S1+i}, v{S1+i} row_ror:8 row_mask:0xf bank_mask:0x3")
    for i in range(16):
        k.e(f"v_add_f32_dpp v{S1+i}, v{S2+i}, v{S2+i} row_ror:8 row_mask:0xf bank_mask:0xc")
    for i in range(8):
        k.e(f"v_add_f32_dpp v{S2+i}, v{S1+i}, v{S1+i} row_half_mirror row_mask:0xf bank_mask:0x5")
    for i in range(8):
        k.e(f"v_add_f32_dpp v{S2+i}, v{S1+8+i}, v{S1+8+i} row_half_mirror row_mask:0xf bank_mask:0xa")
    for op in ["quad_perm:[1,0,3,2]", "quad_perm:[2,3,0,1]"]:
        for i in range(8):
            k.e(f"v_add_f32_dpp v{S2+i}, v{S2+i}, v{S2+i} {op} row_mask:0xf bank_mask:0xf")
    k.e(f"""
    s_lshl_b32 s3, s{k.sw}, 9
    s_add_u32 s3, s3, {ZS}
    v_bfe_u32 v{G.t1}, v{k.vl}, 2, 2
    v_lshl_add_u32 v{G.t1}, v{G.t1}, 7, s3
    v_add_u32 v{G.t1}, v{G.t1}, v{vg}
    ds_write_b128 v{G.t1}, {vr(S2,4)}
    ds_write_b128 v{G.t1}, {vr(S2+4,4)} offset:64
    v_lshrrev_b32 v{G.t1}, 6, v0
    v_lshlrev_b32 v{G.t1}, 10, v{G.t1}
    v_lshl_add_u32 v{G.t1}, v{k.vl}, 2, v{G.t1}
    v_add_u32 v{G.t1}, {ZS}, v{G.t1}
    v_lshlrev_b32 v{G.t2}, 3, v0
    s_lshl_b32 s{sob}, s{tb}, 3
    s_add_u32 s{sob}, s{sob}, s{jn}
    s_sub_u32 s{sob}, s{sob}, 8
    s_lshl_b32 s{sob}, s{sob}, 10
    s_add_u32 s{sob}, s{sob}, {ZST}
    s_cmp_ge_u32 s{k.sw}, 2
    s_waitcnt lgkmcnt(0)
    s_barrier
    """)
    lnp = k.lab("nopub")
    k.e(f"""
    s_cbranch_scc1 {lnp}
    ds_read_b32 v{X}, v{G.t1}
    ds_read_b32 v{X+1}, v{G.t1} offset:256
    ds_read_b32 v{X+2}, v{G.t1} offset:512
    ds_read_b32 v{X+3}, v{G.t1} offset:768
    s_waitcnt lgkmcnt(0)
    v_add_f32 v{X}, v{X}, v{X+2}
    v_add_f32 v{X+1}, v{X+1}, v{X+3}
    v_and_b32 v{X+1}, 0x7fffffff, v{X+1}
    buffer_store_dwordx2 {vr(X,2)}, v{G.t2}, {sr(rws,4)}, s{sob} offen sc1
    {lnp}:
    v_add_u32 v{G.t0}, {ZT-TA}, v{G.t0}
    """)
    k.stamp_at(6)
    k.e("s_barrier")
    for q in range(2):
        for ti in range(4): k.e(f"ds_read_b128 {vr(TV+16*q+4*ti,4)}, v{G.t0} offset:{512*q+64*ti}")
    k.e("s_waitcnt lgkmcnt(0)")
    oi = 0
    for kp in range(2):
        for fi in range(7):
            o = OUTS + 4*(oi % 4); oi += 1
            for u in range(2):
                ti = 2*kp + u; a = G.a(fi, ti)
                for h in (0, 2): k.e(f"v_pk_fma_f32 {vr(a+h,2)}, {vr(a+h,2)}, {vr(TV+4*ti+h,2)}, {vr(TV+16+4*ti+h,2)}")
            for u in range(2):
                a = G.a(fi, 2*kp+u)
                k.e(f"v_cvt_pk_bf16_f32 v{o+2*u}, v{a}, v{a+1}\nv_cvt_pk_bf16_f32 v{o+2*u+1}, v{a+2}, v{a+3}")
            k.e(f"buffer_store_dwordx4 {vr(o,4)}, v{G.v16}, {sr(rws,4)}, s{so} offen offset:{(fi%4)*1024}{stf('z')}")
            if fi == 3: k.e(f"s_add_u32 s{so}, s{so}, 4096")
        if kp == 0: k.e(f"s_add_u32 s{so}, s{so}, {7168-4096}")
    finish(k)
    return k

def k_spat():
    NS, NSTG = 4, 32
    k = Kern("spat_kernel", 256, 512, NS*30720)
    P = begin(k, 256, ["w_sp", "b_sp", "ws"])
    tb, ft = tilemap(k, 2, 3)
    G = Gemm(k, NS, NSTG)
    soa, sow, so, so2 = k.s(), k.s(), k.s(), k.s()
    k.e(f"""
    s_mul_i32 s{soa}, s{ft}, {32*14336}
    s_add_u32 s{soa}, s{soa}, {Z2T}
    s_lshl_b32 s{sow}, s{tb}, 19
    """)
    rws = G.srd(P["ws"], UU + 0x700000); rw = G.srd(P["w_sp"], 2048*2048*2); rb = G.srd(P["b_sp"], 4096)
    A = op_linear(k, G, (NS*16384, 14336, NS), 4, rws, soa, 14336, 7, 7168, "s_mov_b32 s3, 0", uneven=True)
    B = op_r(k, G, (0, 16384, NS), 4096, rw, sow, 2)
    G.loader(A, B)
    G.zero()
    ZR = k.v(28); BB = k.v(2); CC = k.v(2); vb = k.v(); v8 = k.v(); vc = k.v()
    k.e(f"""
    s_lshl_b32 s{so}, s{tb}, 2
    s_add_u32 s{so}, s{so}, s{k.sw}
    s_lshl_b32 s3, s{so}, 6
    v_and_b32 v{vc}, 15, v{k.vl}
    v_lshl_add_u32 v{vb}, v{vc}, 1, s3
    s_mul_i32 s{so}, s{so}, 112
    s_mul_i32 s3, s{ft}, 7
    s_add_u32 s{so}, s{so}, s3
    s_lshl_b32 s{so}, s{so}, 10
    s_add_u32 s{so}, s{so}, {Z1}
    s_add_u32 s{so2}, s{so}, 4096
    v_lshlrev_b32 v{v8}, 3, v{k.vl}
    """)
    G.emit_srds()
    extra = [f"buffer_load_dwordx4 {vr(ZR+4*i,4)}, v{G.v16}, {sr(rws,4)}, s{so if i<4 else so2} offen offset:{(i%4)*1024}" for i in range(7)]
    extra += [f"buffer_load_ushort v{BB+i}, v{vb}, {sr(rb,4)}, 0 offen offset:{32*i}" for i in range(2)]
    G.first()
    G.loop(False, extra)
    k.e(f"""
    s_mul_i32 s{so}, s{tb}, 112
    s_mul_i32 s3, s{ft}, 7
    s_add_u32 s{so}, s{so}, s3
    s_lshl_b32 s{so}, s{so}, 12
    s_lshl_b32 s3, s{k.sw}, 10
    s_add_u32 s{so}, s{so}, s3
    s_add_u32 s{so}, s{so}, {UU}
    s_waitcnt vmcnt(0) lgkmcnt(0)
    v_lshlrev_b32 v{BB}, 16, v{BB}
    v_lshlrev_b32 v{BB+1}, 16, v{BB+1}
    """)
    T = G.FA[0]
    for mi in range(7):
        for ni in range(2):
            a = G.a(mi, ni)
            sel = "op_sel_hi:[1,0]" if ni == 0 else "op_sel:[0,1] op_sel_hi:[1,1]"
            for d in range(2):
                z = ZR + 4*mi + 2*ni + d
                unpack2(k, z, T+2*d, T+2*d+1)
                k.e(f"v_pk_add_f32 {vr(a+2*d,2)}, {vr(a+2*d,2)}, {vr(BB,2)} {sel}")
            for d in range(2): k.e(f"v_pk_mul_f32 {vr(T+2*d,2)}, {vr(T+2*d,2)}, {vr(a+2*d,2)}")
            for d in range(2): k.e(f"v_cvt_pk_bf16_f32 v{ZR+4*mi+2*ni+d}, v{T+2*d}, v{T+2*d+1}")
            k.e(f"buffer_store_dwordx2 {vr(ZR+4*mi+2*ni,2)}, v{v8}, {sr(rws,4)}, s{so} offen offset:{ni*512}{stf('u')}")
        if mi < 6: k.e(f"s_add_u32 s{so}, s{so}, 4096")
    finish(k)
    return k

def k_wout():
    NS = 4
    OT = NS*24576
    k = Kern("wout_kernel", 256, 512, OT + 16384)
    P = begin(k, 256, ["w_out", "out", "ws"])
    tb, jn = tilemap(k, 2, 3)
    G = Gemm(k, NS, 28)
    th, chh, sob, sow, t0s, so, so2 = k.s(), k.s(), k.s(), k.s(), k.s(), k.s(), k.s()
    k.e(f"""
    s_lshr_b32 s{th}, s{k.sw}, 1
    s_and_b32 s{chh}, s{k.sw}, 1
    s_lshl_b32 s{t0s}, s{chh}, 1
    s_mul_i32 s{sob}, s{tb}, {112*4096}
    s_add_u32 s{sob}, s{sob}, {UU}
    s_lshl_b32 s{sow}, s{jn}, 7
    """)
    rws = G.srd(P["ws"], UU + 0x700000); rw = G.srd(P["w_out"], 1792*1024*2); ro = G.srd(P["out"], 2048*1024*2)
    B = op_linear(k, G, (0, 16384, NS), 4, rws, sob, 16384, 4, 0, f"s_lshl_b32 s3, s{th}, 11", half=True)
    A = op_w(k, G, (NS*16384, 8192, NS), 128, 2048, rw, sow, 2, t0s)
    G.loader(A, B)
    G.zero()
    HR = k.v(16)
    k.e(f"""
    s_lshl_b32 s{so}, s{tb}, 18
    s_lshl_b32 s3, s{jn}, 14
    s_add_u32 s{so}, s{so}, s3
    s_lshl_b32 s3, s{chh}, 13
    s_add_u32 s{so}, s{so}, s3
    s_lshl_b32 s3, s{th}, 12
    s_add_u32 s{so}, s{so}, s3
    s_add_u32 s{so}, s{so}, {HH}
    """)
    extra = [f"buffer_load_dwordx4 {vr(HR+4*i,4)}, v{G.v16}, {sr(rws,4)}, s{so} offen offset:{i*1024}" for i in range(4)]
    vdo = [k.v() for _ in range(4)]
    rowimg_dma_offsets(k, G, 2048, vdo, k.sw)
    vx0, vx1, vrd = k.v(), k.v(), k.v()
    rowimg_base0(k, G, vx0, f"s_lshl_b32 s3, s{th}, 6", OT)
    k.e(f"""
    s_lshl_b32 s3, s{chh}, 6
    v_xor_b32 v{vx0}, s3, v{vx0}
    v_xor_b32 v{vx1}, 32, v{vx0}
    s_lshl_b32 s3, s{k.sw}, 12
    s_add_u32 s3, s3, {OT}
    v_add_u32 v{vrd}, s3, v{G.v16}
    s_lshl_b32 s{so2}, s{tb}, 18
    s_lshl_b32 s3, s{jn}, 7
    s_add_u32 s{so2}, s{so2}, s3
    """)
    G.emit_srds()
    G.first()
    G.loop(False, extra, 4)
    k.e("s_waitcnt vmcnt(0)\ns_nop 4")
    T = G.FA[0]
    for ni in range(4):
        for mi in range(2):
            a = G.a(mi, ni)
            for d in range(2): unpack2(k, HR+4*ni+2*mi+d, T+2*d, T+2*d+1)
            for d in range(2): k.e(f"v_pk_add_f32 {vr(a+2*d,2)}, {vr(a+2*d,2)}, {vr(T+2*d,2)}")
            for d in range(2): k.e(f"v_cvt_pk_bf16_f32 v{HR+4*ni+2*mi+d}, v{a+2*d}, v{a+2*d+1}")
            k.e(f"ds_write_b64 v{vx0 if mi == 0 else vx1}, {vr(HR+4*ni+2*mi,2)} offset:{ni*2048}")
    k.e("s_waitcnt lgkmcnt(0)\ns_barrier")
    for j in range(4): k.e(f"ds_read_b128 {vr(HR+4*j,4)}, v{vrd} offset:{j*1024}")
    for j in range(4):
        k.e(f"s_waitcnt lgkmcnt({3-j})")
        k.e(f"buffer_store_dwordx4 {vr(HR+4*j,4)}, v{vdo[j]}, {sr(ro,4)}, s{so2} offen offset:{j*1024}{stf('o')}")
    finish(k)
    return k

def all_kernels():
    return [k_prep(), k_attn(), k_oproj(), k_win(), k_spat(), k_wout()]
```

```python
import sys, math
from asmlib import *

KA = dict(x=0, wq=8, wk=16, wv=24, wo=32, w_in=48, w_sp=56, b_sp=64, w_out=72, out=80, dbg=88, ws=96)
XN, KV, OO, HH, HST, CS = 0x0, 0x400000, 0x500000, 0x900000, 0xD00000, 0xD80000
Z1, Z2T, ZST, UU = 0xE00000, 0x1500000, 0x1C00000, 0x1D00000
WS_SIZE = 0x10000000
LOG2E = 1.4426950408889634
SIDE = [0, 1, 4, 5]
OPT = {}

def begin(k, nwg, loads):
    k.end = f"L_{k.name}_end"
    k.e(f"s_cmp_ge_u32 s2, {nwg}\ns_cbranch_scc1 {k.end}x")
    if STAMP[0]:
        for i in range(82, 96): k.e(f"s_mov_b32 s{i}, 0")
    k.stamp_at(0, True); k.stamp_at(1)
    P = {}
    for n in loads:
        P[n] = k.s(2)
        k.e(f"s_load_dwordx2 {sr(P[n],2)}, s[0:1], {KA[n]}")
    k.sw = k.s()
    k.vl = k.v()
    k.e(f"v_lshrrev_b32 v{k.vl}, 6, v0\ns_nop 0\nv_readfirstlane_b32 s{k.sw}, v{k.vl}\nv_and_b32 v{k.vl}, 63, v0")
    return P

KIDX = {"colsum_kernel":0, "prep_kernel":1, "attn_kernel":2, "oproj_kernel":3, "win_kernel":4, "znorm_kernel":5, "spat_kernel":6, "wout_kernel":7}
def finish(k):
    k.e(f"{k.end}:")
    k.stamp_flush(KIDX[k.name])
    k.e(f"{k.end}x:\ns_endpgm")
    k.e("\n".join(getattr(k, "outofline", [])))

def tilemap(k, bm_log, bn_log):
    assert bm_log + bn_log == 5
    tm, tn, t = k.s(), k.s(), k.s()
    gn_log = 4 - bn_log
    k.e(f"""
    s_and_b32 s{t}, s2, 7
    s_lshr_b32 s{tm}, s{t}, {gn_log}
    s_lshl_b32 s{tm}, s{tm}, {bm_log}
    s_and_b32 s{tn}, s{t}, {(1<<gn_log)-1}
    s_lshl_b32 s{tn}, s{tn}, {bn_log}
    s_lshr_b32 s{t}, s2, {3+bn_log}
    s_add_u32 s{tm}, s{tm}, s{t}
    s_lshr_b32 s{t}, s2, 3
    s_and_b32 s{t}, s{t}, {(1<<bn_log)-1}
    s_add_u32 s{tn}, s{tn}, s{t}
    """)
    return tm, tn

def k_colsum():
    k = Kern("colsum_kernel", 224, 256, 8192)
    P = begin(k, 224, ["w_in", "ws"])
    cb, ks, so = k.s(), k.s(), k.s()
    k.e(f"""
    s_mul_i32 s{ks}, s2, 2341
    s_lshr_b32 s{ks}, s{ks}, 16
    s_mul_i32 s3, s{ks}, 28
    s_sub_u32 s{cb}, s2, s3
    s_lshl_b32 s{so}, s{ks}, 7
    s_lshl_b32 s3, s{k.sw}, 5
    s_add_u32 s{so}, s{so}, s3
    s_mul_i32 s{so}, s{so}, 7168
    s_lshl_b32 s3, s{cb}, 8
    s_add_u32 s{so}, s{so}, s3
    s_waitcnt lgkmcnt(0)
    """)
    rw = k.srd(P["w_in"], 1024*3584*2)
    rws = k.srd(P["ws"], 8*3584*4, CS)
    vo, t = k.v(), k.v()
    k.e(f"""
    v_lshrrev_b32 v{t}, 4, v{k.vl}
    v_mul_u32_u24 v{vo}, 7168, v{t}
    v_and_b32 v{t}, 15, v{k.vl}
    v_lshl_add_u32 v{vo}, v{t}, 4, v{vo}
    """)
    D = k.v(32); A = k.v(8)
    for j in range(8):
        k.e(f"buffer_load_dwordx4 {vr(D+4*j,4)}, v{vo}, {sr(rw,4)}, s{so} offen")
        if j < 7: k.e(f"s_add_u32 s{so}, s{so}, {4*7168}")
    for i in range(8): k.e(f"v_mov_b32 v{A+i}, 0")
    for j in range(8):
        k.e(f"s_waitcnt vmcnt({7-j})")
        for d in range(4):
            k.e(f"""
            v_lshlrev_b32 v{t}, 16, v{D+4*j+d}
            v_and_b32 v{D+4*j+d}, 0xffff0000, v{D+4*j+d}
            v_add_f32 v{A+2*d}, v{A+2*d}, v{t}
            v_add_f32 v{A+2*d+1}, v{A+2*d+1}, v{D+4*j+d}
            """)
    k.e(f"""
    v_lshlrev_b32 v{t}, 5, v0
    ds_write_b128 v{t}, {vr(A,4)}
    ds_write_b128 v{t}, {vr(A+4,4)} offset:16
    s_waitcnt lgkmcnt(0)
    s_barrier
    s_cmp_ge_u32 s{k.sw}, 2
    s_cbranch_scc1 {k.end}
    v_lshlrev_b32 v{t}, 2, v0
    """)
    for j in range(16): k.e(f"ds_read_b32 v{D+j}, v{t} offset:{j*512}")
    k.e("s_waitcnt lgkmcnt(0)")
    for j in range(1, 16): k.e(f"v_add_f32 v{D}, v{D}, v{D+j}")
    k.e(f"""
    s_mul_i32 s{so}, s{ks}, {3584*4}
    s_lshl_b32 s3, s{cb}, 9
    s_add_u32 s{so}, s{so}, s3
    buffer_store_dword v{D}, v{t}, {sr(rws,4)}, s{so} offen
    """)
    finish(k)
    return k

def k_prep():
    WL, XL = 0, 65536
    RED = XL + 34816
    PFS = RED + 8192
    k = Kern("prep_kernel", 256, 512, PFS + 1024)
    P = begin(k, 256, ["x", "wk", "wv", "ws", "wq"])
    wh, tk, xo, xo2, so = k.s(), k.s(), k.s(), k.s(), k.s()
    pw = k.s(2)
    k.e(f"""
    s_lshr_b32 s{wh}, s2, 3
    s_and_b32 s{wh}, s{wh}, 1
    s_lshr_b32 s{tk}, s2, 4
    s_and_b32 s3, s2, 7
    s_lshl_b32 s3, s3, 4
    s_add_u32 s{tk}, s{tk}, s3
    s_lshl_b32 s{xo}, s{tk}, 15
    s_lshl_b32 s3, s{k.sw}, 13
    s_add_u32 s{xo}, s{xo}, s3
    s_add_u32 s{xo2}, s{xo}, 4096
    s_waitcnt lgkmcnt(0)
    s_cmp_eq_u32 s{wh}, 0
    s_cselect_b64 {sr(pw,2)}, {sr(P['wk'],2)}, {sr(P['wv'],2)}
    """)
    rx = k.srd(P["x"], 2048*1024*2)
    rw = k.srd(pw, 1024*32*2)
    rws = k.srd(P["ws"], UU)
    v16, vsw, t, t2 = k.v(), k.v(), k.v(), k.v()
    X = k.v(32)
    rq = k.srd(P["wq"], 1024*1024*2)
    k.e(f"v_lshlrev_b32 v{v16}, 4, v{k.vl}")
    lc = k.lab("comp")
    k.e(f"s_cmp_lt_u32 s{k.sw}, 4\ns_cbranch_scc1 {lc}")
    k.e(f"""
    v_lshrrev_b32 v{t}, 5, v{k.vl}
    v_lshlrev_b32 v{t}, 5, v{t}
    v_xor_b32 v{vsw}, v{v16}, v{t}
    s_lshr_b32 s{so}, s2, 4
    s_add_u32 s{so}, s{so}, s{k.sw}
    s_lshl_b32 s{so}, s{so}, 12
    """)
    for jj in range(4):
        k.e(f"s_and_b32 s{so}, s{so}, 0xffff\ns_add_u32 m0, s{so}, {WL}\ns_nop 0")
        for j in range(4):
            k.e(f"buffer_load_dwordx4 v{vsw}, {sr(rw,4)}, s{so} offen offset:{j*1024} lds")
        if jj < 3: k.e(f"s_add_u32 s{so}, s{so}, 16384")
    k.e(f"""
    v_lshlrev_b32 v{t}, 7, v{k.vl}
    s_lshr_b32 s{so}, s2, 3
    s_lshl_b32 s{so}, s{so}, 2
    s_and_b32 s3, s{k.sw}, 3
    s_add_u32 s{so}, s{so}, s3
    s_lshl_b32 s{so}, s{so}, 14
    s_lshl_b32 s3, s3, 8
    s_add_u32 m0, s3, {PFS}
    s_add_u32 s3, s{so}, 8192
    buffer_load_dword v{t}, {sr(rq,4)}, s{so} offen lds
    buffer_load_dword v{t}, {sr(rq,4)}, s3 offen lds
    s_waitcnt vmcnt(2)
    s_barrier
    s_lshl_b32 s3, s2, 2
    s_add_u32 s3, s3, s{k.sw}
    s_sub_u32 s3, s3, 4
    s_cmp_ge_u32 s3, 128
    s_cbranch_scc1 {k.end}x
    s_lshl_b32 s3, s3, 10
    s_add_u32 s3, s3, {ZST}
    v_mov_b32 v{X}, -1
    v_mov_b32 v{X+1}, -1
    v_mov_b32 v{X+2}, -1
    v_mov_b32 v{X+3}, -1
    buffer_store_dwordx4 {vr(X,4)}, v{v16}, {sr(rws,4)}, s3 offen
    s_endpgm
    {lc}:
    """)
    for r in range(4):
        for hf in range(2):
            k.e(f"buffer_load_dwordx4 {vr(X+8*r+4*hf,4)}, v{v16}, {sr(rx,4)}, s{xo if r<2 else xo2} offen offset:{(r&1)*2048+hf*1024}")
    ones = k.v(); S = k.v(8)
    k.e(f"v_mov_b32 v{ones}, 0x3f803f80")
    for i in range(8): k.e(f"v_mov_b32 v{S+i}, 0")
    k.e("s_waitcnt vmcnt(0)")
    k.stamp_at(2)
    for d in range(8):
        for r in range(4):
            k.e(f"v_dot2c_f32_bf16 v{S+r}, v{X+8*r+d}, v{ones}")
        for r in range(4):
            k.e(f"v_dot2c_f32_bf16 v{S+4+r}, v{X+8*r+d}, v{X+8*r+d}")
    k.e("s_nop 2")
    for op in ["row_shr:1 row_mask:0xf", "row_shr:2 row_mask:0xf", "row_shr:4 row_mask:0xf", "row_shr:8 row_mask:0xf",
               "row_bcast:15 row_mask:0xa", "row_bcast:31 row_mask:0xc"]:
        for i in range(8):
            k.e(f"v_add_f32_dpp v{S+i}, v{S+i}, v{S+i} {op} bank_mask:0xf")
    srs = k.s(4); snm = k.s(4)
    for r in range(4):
        k.e(f"v_mul_f32 v{S+r}, {hex(f2u(1/1024))}, v{S+r}")
        k.e(f"v_mul_f32 v{S+4+r}, {hex(f2u(1/1024))}, v{S+4+r}")
    for r in range(4):
        k.e(f"v_fma_f32 v{S+4+r}, -v{S+r}, v{S+r}, v{S+4+r}")
    for r in range(4):
        k.e(f"v_max_f32 v{S+4+r}, 0, v{S+4+r}")
    for r in range(4):
        k.e(f"v_add_f32 v{S+4+r}, {hex(f2u(1e-5))}, v{S+4+r}")
    for r in range(4):
        k.e(f"v_rsq_f32 v{S+4+r}, v{S+4+r}")
    k.e("s_nop 0")
    for r in range(4):
        k.e(f"v_mul_f32 v{S+r}, v{S+r}, v{S+4+r}")
    k.e("s_nop 0")
    for r in range(4):
        k.e(f"v_readlane_b32 s{srs+r}, v{S+4+r}, 63")
        k.e(f"v_readlane_b32 s{snm+r}, v{S+r}, 63")
    k.e("s_nop 1")
    vw = k.v()
    k.e(f"""
    v_mul_u32_u24 v{vw}, 272, v{k.vl}
    s_lshl_b32 s3, s{k.sw}, 6
    s_add_u32 s3, s3, {XL}
    v_add_u32 v{vw}, s3, v{vw}
    """)
    for r in range(4):
        k.e(f"v_mov_b32 v{S+r}, s{snm+r}")
    for r in range(4):
        for d in range(8):
            x = X + 8*r + d
            k.e(f"""
            v_lshlrev_b32 v{t}, 16, v{x}
            v_and_b32 v{t2}, 0xffff0000, v{x}
            v_fma_f32 v{t}, v{t}, s{srs+r}, -v{S+r}
            v_fma_f32 v{t2}, v{t2}, s{srs+r}, -v{S+r}
            v_cvt_pk_bf16_f32 v{x}, v{t}, v{t2}
            """)
        for hf in range(2):
            k.e(f"ds_write_b128 v{vw}, {vr(X+8*r+4*hf,4)} offset:{hf*17408+r*16}")
    vx, vb0, vb1, g = k.v(), k.v(), k.v(), k.v()
    k.e(f"""
    v_lshrrev_b32 v{g}, 4, v{k.vl}
    v_mul_u32_u24 v{vx}, 272, v{g}
    v_and_b32 v{t}, 15, v{k.vl}
    v_lshl_add_u32 v{vx}, v{t}, 4, v{vx}
    s_mul_i32 s3, s{k.sw}, {8*1088}
    s_add_u32 s3, s3, {XL}
    v_add_u32 v{vx}, s3, v{vx}
    """)
    k.e(f"""
    v_lshrrev_b32 v{t}, 2, v{t}
    v_lshl_add_u32 v{t}, v{g}, 3, v{t}
    v_lshlrev_b32 v{vb0}, 6, v{t}
    v_and_b32 v{t}, 3, v{k.vl}
    v_lshl_add_u32 v{vb0}, v{t}, 3, v{vb0}
    v_and_b32 v{t}, 1, v{g}
    v_lshl_add_u32 v{vb0}, v{t}, 5, v{vb0}
    s_lshl_b32 s3, s{k.sw}, 14
    v_add_u32 v{vb0}, s3, v{vb0}
    v_xor_b32 v{vb1}, 32, v{vb0}
    s_waitcnt vmcnt(0) lgkmcnt(0)
    s_barrier
    """)
    k.stamp_at(3)
    W = k.v(64); ACC = k.v(8)
    for kb in range(8):
        k.e(f"ds_read_b128 {vr(X+4*kb,4)}, v{vx} offset:{kb*1088}")
    for half in range(2):
        pass
    for kb in range(8):
        for nt in range(2):
            for q in range(2):
                k.e(f"ds_read_b64_tr_b16 {vr(W+8*kb+4*nt+2*q,2)}, v{vb0 if nt==0 else vb1} offset:{WL+kb*2048+q*256}")
        if kb % 2 == 1: k.e("s_waitcnt lgkmcnt(4)")
    k.e("s_waitcnt lgkmcnt(0)")
    k.e(f"""
    s_lshr_b32 s{so}, s{tk}, 3
    s_lshl_b32 s{so}, s{so}, 18
    s_lshl_b32 s3, s{k.sw}, 16
    s_add_u32 s{so}, s{so}, s3
    s_lshl_b32 s3, s{wh}, 13
    s_add_u32 s{so}, s{so}, s3
    s_and_b32 s3, s{tk}, 7
    s_lshl_b32 s3, s3, 10
    s_add_u32 s{so}, s{so}, s3
    """)
    lv, lj = k.lab("v"), k.lab("j")
    k.e(f"s_cmp_eq_u32 s{wh}, 1\ns_cbranch_scc1 {lv}")
    for which in range(2):
        if which == 1: k.e(f"{lv}:")
        for kb in range(8):
            for nt in range(2):
                a, b = vr(W+8*kb+4*nt,4), vr(X+4*kb,4)
                if which == 1: a, b = b, a
                c = "0" if kb == 0 else vr(ACC+4*nt,4)
                k.e(f"v_mfma_f32_16x16x32_bf16 {vr(ACC+4*nt,4)}, {a}, {b}, {c}")
        for i in range(4):
            k.e(f"buffer_store_dwordx4 {vr(X+4*(2*i+which),4)}, v{v16}, {sr(rws,4)}, s{so} offen")
            if i < 3: k.e(f"s_add_u32 s{so}, s{so}, 16384")
        if which == 0: k.e(f"s_branch {lj}")
    k.e(f"{lj}:")
    k.e(f"""
    s_lshl_b32 s3, s{k.sw}, 11
    s_add_u32 s3, s3, {RED}
    v_add_u32 v{t}, s3, v{v16}
    s_nop 7
    ds_write_b128 v{t}, {vr(ACC,4)}
    ds_write_b128 v{t}, {vr(ACC+4,4)} offset:1024
    s_waitcnt lgkmcnt(0)
    s_barrier
    s_cmp_ge_u32 s{k.sw}, 2
    s_cbranch_scc1 {k.end}
    s_lshl_b32 s3, s{k.sw}, 10
    s_add_u32 s3, s3, {RED}
    v_add_u32 v{t}, s3, v{v16}
    """)
    for w in range(4): k.e(f"ds_read_b128 {vr(W+4*w,4)}, v{t} offset:{w*2048}")
    sa, sh = k.s(), k.s()
    k.e(f"""
    s_and_b32 s3, s{tk}, 1
    s_cmp_eq_u32 s{wh}, 0
    s_cselect_b32 s{sa}, s{k.sw}, s3
    s_cselect_b32 s{sh}, s3, s{k.sw}
    s_lshr_b32 s{so}, s{tk}, 1
    s_lshl_b32 s{so}, s{so}, 12
    s_lshl_b32 s3, s{wh}, 11
    s_add_u32 s{so}, s{so}, s3
    s_lshl_b32 s3, s{sa}, 10
    s_add_u32 s{so}, s{so}, s3
    s_lshl_b32 s3, s{sh}, 8
    s_add_u32 s{so}, s{so}, s3
    s_add_u32 s{so}, s{so}, {KV}
    v_and_b32 v{t}, 15, v{k.vl}
    v_lshlrev_b32 v{t}, 4, v{t}
    v_and_b32 v{t2}, 1, v{g}
    v_lshl_add_u32 v{t}, v{t2}, 9, v{t}
    v_lshrrev_b32 v{t2}, 1, v{g}
    v_lshl_add_u32 v{t}, v{t2}, 3, v{t}
    s_waitcnt lgkmcnt(0)
    """)
    for i in range(4):
        k.e(f"v_add_f32 v{W+i}, v{W+i}, v{W+4+i}\nv_add_f32 v{W+8+i}, v{W+8+i}, v{W+12+i}")
    for i in range(4):
        k.e(f"v_add_f32 v{W+i}, v{W+i}, v{W+8+i}")
    k.e(f"""
    v_cvt_pk_bf16_f32 v{W}, v{W}, v{W+1}
    v_cvt_pk_bf16_f32 v{W+1}, v{W+2}, v{W+3}
    buffer_store_dwordx2 {vr(W,2)}, v{t}, {sr(rws,4)}, s{so} offen
    """)
    finish(k)
    return k

def k_attn():
    NS = 4; SZ = 24576; NSTG = 16
    CSL, SCR, FLAG = 0, 16384, 57344
    k = Kern("attn_kernel", 256, 512, 163840)
    P = begin(k, 256, ["wq", "ws", "wo", "w_in", "w_sp", "w_out"])
    tb, hp = tilemap(k, 1, 4)
    hd, tt = k.s(), k.s()
    sxo, swo, swr, srd_, sm0x, sm0w, cnt = k.s(), k.s(), k.s(), k.s(), k.s(), k.s(), k.s()
    k.e(f"""
    s_lshr_b32 s{hd}, s{k.sw}, 2
    s_and_b32 s{tt}, s{k.sw}, 3
    s_lshl_b32 s{sxo}, s{tb}, 18
    s_lshl_b32 s{swo}, s{hp}, 7
    s_lshl_b32 s{sm0x}, s{k.sw}, 11
    s_lshl_b32 s{sm0w}, s{k.sw}, 10
    s_add_u32 s{sm0w}, s{sm0w}, 16384
    s_mov_b32 s{swr}, 0
    s_waitcnt lgkmcnt(0)
    """)
    rq = k.srd(P["wq"], 1024*1024*2)
    rws = k.srd(P["ws"], Z1)
    v16, vdx, vdw, t, t2 = k.v(), k.v(), k.v(), k.v(), k.v()
    k.e(f"""
    v_lshlrev_b32 v{v16}, 4, v{k.vl}
    v_add_u32 v{vdx}, s{sm0x}, v{v16}
    v_lshrrev_b32 v{t}, 3, v0
    v_lshlrev_b32 v{vdw}, 11, v{t}
    v_and_b32 v{t}, 7, v{k.vl}
    v_bfe_u32 v{t2}, v{k.vl}, 4, 1
    v_lshlrev_b32 v{t2}, 2, v{t2}
    v_xor_b32 v{t}, v{t}, v{t2}
    v_lshl_add_u32 v{vdw}, v{t}, 4, v{vdw}
    """)
    def dma_stage():
        return [f"s_add_u32 m0, s{swr}, s{sm0x}",
                f"s_nop 0",
                f"buffer_load_dwordx4 v{vdx}, {sr(rws,4)}, s{sxo} offen lds",
                f"buffer_load_dwordx4 v{vdx}, {sr(rws,4)}, s{sxo} offen offset:1024 lds",
                f"s_add_u32 m0, s{swr}, s{sm0w}",
                f"s_add_u32 s{sxo}, s{sxo}, 16384",
                f"buffer_load_dwordx4 v{vdw}, {sr(rq,4)}, s{swo} offen lds",
                f"s_add_u32 s{swo}, s{swo}, 131072",
                f"s_add_u32 s{swr}, s{swr}, {SZ}",
                f"s_cmp_eq_u32 s{swr}, {NS*SZ}",
                f"s_cselect_b32 s{swr}, 0, s{swr}"]
    for i in range(NS-1):
        k.e("\n".join(dma_stage()))
    vB0, vA0, vB, vA = k.v(), k.v(), k.v(), k.v()
    h, b4, j = k.v(), k.v(), k.v()
    k.e(f"""
    v_lshrrev_b32 v{h}, 5, v{k.vl}
    v_bfe_u32 v{b4}, v{k.vl}, 4, 1
    v_and_b32 v{j}, 15, v{k.vl}
    v_lshlrev_b32 v{vB0}, 4, v{j}
    v_lshl_add_u32 v{vB0}, v{h}, 8, v{vB0}
    v_lshl_add_u32 v{vB0}, v{b4}, 10, v{vB0}
    s_lshl_b32 s3, s{tt}, 11
    v_add_u32 v{vB0}, s3, v{vB0}
    v_lshrrev_b32 v{t}, 2, v{j}
    v_lshl_add_u32 v{t}, v{h}, 3, v{t}
    v_lshlrev_b32 v{vA0}, 7, v{t}
    v_and_b32 v{t}, 3, v{j}
    v_lshl_add_u32 v{vA0}, v{t}, 3, v{vA0}
    v_lshl_add_u32 v{vA0}, v{b4}, 5, v{vA0}
    v_lshrrev_b32 v{t}, 3, v{j}
    v_xor_b32 v{t}, s{hd}, v{t}
    v_lshl_add_u32 v{vA0}, v{t}, 6, v{vA0}
    v_add_u32 v{vA0}, 16384, v{vA0}
    s_mov_b32 s{srd_}, 0
    """)
    S0 = k.v(16, 4); S1 = k.v(16, 4); C = k.v(16, 4); O = k.v(16, 4)
    Q = k.v(8); Pp = k.v(8); L = k.v(4); ONES = k.v(4); KF = k.v(8); VF = k.v(8)
    FB, FA, QA = S0, S1, O
    for i in range(16): k.e(f"v_mov_b32 v{QA+i}, 0")
    skv, skvw, vdk = k.s(), k.s(), k.v()
    k.e(f"""
    s_lshl_b32 s3, s{k.sw}, 12
    v_add_u32 v{vdk}, s3, v{v16}
    """)
    def dma_kv(lds_base_expr):
        o = [f"s_lshl_b32 s3, s{k.sw}, 12", f"s_add_u32 m0, s3, {lds_base_expr}", "s_nop 0"]
        for jx in range(4):
            o.append(f"buffer_load_dwordx4 v{vdk}, {sr(rws,4)}, s{skv} offen offset:{jx*1024} lds")
        o.append(f"s_add_u32 s{skv}, s{skv}, 32768")
        return o
    FB2, FA2 = C, k.v(16, 4)
    FS = [(FB, FA), (FB2, FA2)]
    def mfA(st_):
        fb, fa = FS[st_]
        return [f"v_mfma_f32_32x32x16_bf16 {vr(QA,16)}, {vr(fa+4*st,4)}, {vr(fb+4*st,4)}, {vr(QA,16)}" for st in range(4)]
    def stageA(par, vm, dma, tail="", first=False):
        fb, fa = FS[par]
        k.e(f"v_add_u32 v{vB}, s{srd_}, v{vB0}\nv_add_u32 v{vA}, s{srd_}, v{vA0}")
        k.e(f"s_add_u32 s{srd_}, s{srd_}, {SZ}\ns_cmp_eq_u32 s{srd_}, {NS*SZ}\ns_cselect_b32 s{srd_}, 0, s{srd_}")
        k.e(f"s_waitcnt vmcnt({vm}) lgkmcnt(0)\ns_barrier")
        rd = []
        for st in range(4):
            rd.append(f"ds_read_b128 {vr(fb+4*st,4)}, v{vB} offset:{(st>>1)*8192+(st&1)*512}")
            for q in range(2):
                rd.append(f"ds_read_b64_tr_b16 {vr(fa+4*st+2*q,2)}, v{vA} offset:{st*2048+q*512}")
        if first: k.e("\n".join(rd + dma))
        else: k.e("\n".join(interleave(mfA(1-par), rd + dma)))
        k.e(tail)
    k.stamp_at(2)
    la = k.lab("qloop")
    stageA(0, 3*(NS-2), dma_stage(), first=True)
    k.e(f"s_mov_b32 s{cnt}, {(NSTG-NS)//2}\n{la}:")
    stageA(1, 3*(NS-2), dma_stage(), f"s_sub_u32 s{cnt}, s{cnt}, 1")
    stageA(0, 3*(NS-2), dma_stage(), f"s_cmp_lg_u32 s{cnt}, 0\ns_nop 7")
    k.e(f"s_cbranch_scc1 {la}")
    k.e(f"s_mov_b32 s{skv}, {KV}")
    assert (NSTG-NS) % 2 == 0
    for p in range(NS-1):
        rem = NS-2-p
        par = (p+1) % 2
        if p == 0: stageA(par, 3*rem, dma_kv(98304) + dma_kv(131072))
        else: stageA(par, 3*rem + 8, [])
    k.e("s_waitcnt lgkmcnt(0)")
    k.e("\n".join(mfA((NS-1) % 2)))
    k.stamp_at(3)
    qs = (32 ** -0.5) * LOG2E
    k.e(f"""
    v_bfe_u32 v{t}, v{k.vl}, 2, 1
    v_cmp_eq_u32 vcc, v{t}, v{b4}
    v_mov_b32 v{t2}, 0x3f803f80
    s_nop 7
    s_nop 3
    """)
    for i in range(4): k.e(f"v_cndmask_b32 v{ONES+i}, 0, v{t2}, vcc")
    for i in range(16): k.e(f"v_mul_f32 v{QA+i}, {hex(f2u(qs))}, v{QA+i}")
    for i in range(8): k.e(f"v_cvt_pk_bf16_f32 v{Q+i}, v{QA+2*i}, v{QA+2*i+1}")
    exact, sc, snx = k.s(), k.s(), k.s()
    RA = k.s(4); RB = k.s(4); QE = k.s(15); cb, ks, sp, sm0a, smend, sbn, sbc = [k.s() for _ in range(7)]
    vpa, vpb, vp128 = k.v(), k.v(), k.v()
    win, wo_, wsp, wout = P["w_in"], P["wo"], P["w_sp"], P["w_out"]
    k.e(f"""
    s_mul_i32 s{ks}, s2, 2341
    s_lshr_b32 s{ks}, s{ks}, 16
    s_mul_i32 s3, s{ks}, 28
    s_sub_u32 s{cb}, s2, s3
    s_lshl_b32 s{sp}, s{ks}, 7
    s_lshl_b32 s3, s{k.sw}, 4
    s_add_u32 s{sp}, s{sp}, s3
    s_mul_i32 s{sp}, s{sp}, 7168
    s_lshl_b32 s3, s{cb}, 8
    s_add_u32 s{sp}, s{sp}, s3
    s_cmp_lt_u32 s2, 224
    s_cselect_b32 s{sp}, s{sp}, 0
    s_cselect_b32 s{RA+2}, {3*7168+256}, 0
    s_add_u32 s{RA}, s{win}, s{sp}
    s_addc_u32 s{RA+1}, s{win+1}, 0
    s_mov_b32 s{RA+3}, 0x20000
    """)
    for e in range(3):
        p0, p1 = (RA, RA+1) if e == 0 else (QE+3*(e-1), QE+3*(e-1)+1)
        k.e(f"s_add_u32 s{QE+3*e}, s{p0}, {4*7168}\ns_addc_u32 s{QE+3*e+1}, s{p1}, 0\ns_mov_b32 s{QE+3*e+2}, s{RA+2}")
    k.e(f"""
    s_lshr_b32 s{sp}, s2, 3
    s_lshl_b32 s{sp}, s{sp}, 3
    s_add_u32 s{sp}, s{sp}, s{k.sw}
    s_lshl_b32 s3, s{sp}, 13
    s_add_u32 s{QE+12}, s{wo_}, s3
    s_addc_u32 s{QE+13}, s{wo_+1}, 0
    s_mov_b32 s{QE+14}, 8192
    s_mul_i32 s{sp}, s{sp}, {4*7168}
    s_and_b32 s3, s2, 3
    s_mul_i32 s3, s3, 1792
    s_add_u32 s{sp}, s{sp}, s3
    s_add_u32 s{QE+9}, s{win}, s{sp}
    s_addc_u32 s{QE+10}, s{win+1}, 0
    s_mov_b32 s{QE+11}, {3*7168+1792}
    v_lshrrev_b32 v{t}, 4, v{k.vl}
    v_mul_u32_u24 v{t}, 7168, v{t}
    v_lshl_add_u32 v{vpa}, v{j}, 4, v{t}
    v_min_u32 v{t2}, 13, v{j}
    v_lshl_add_u32 v{vpb}, v{t2}, 7, v{t}
    v_lshlrev_b32 v{vp128}, 7, v{k.vl}
    s_mul_i32 s{sm0a}, s{k.sw}, 5120
    s_add_u32 s{sm0a}, s{sm0a}, {SCR}
    s_add_u32 s{smend}, s{sm0a}, 4096
    s_lshl_b32 s{sp}, s2, 2
    s_add_u32 s{sp}, s{sp}, s{k.sw}
    s_sub_u32 s3, s{k.sw}, 4
    s_lshl_b32 s3, s3, 8
    s_add_u32 s3, s3, s2
    s_cmp_lt_u32 s3, 448
    s_cselect_b32 s{sbn}, 8192, 0
    s_cselect_b32 s3, s3, 0
    s_cmp_lt_u32 s{k.sw}, 4
    s_cselect_b32 s{sbn}, 8192, s{sbn}
    s_cselect_b32 s{sp}, s{sp}, s3
    s_cselect_b64 {sr(RB,2)}, {sr(wsp,2)}, {sr(wout,2)}
    s_lshl_b32 s{sp}, s{sp}, 13
    s_add_u32 s{RB}, s{RB}, s{sp}
    s_addc_u32 s{RB+1}, s{RB+1}, 0
    s_mov_b32 s{RB+3}, 0x20000
    s_mov_b32 s{sbc}, 0
    """)
    def side():
        o = [f"s_cmp_eq_u32 s{sbc}, s{k.sw}", f"s_cselect_b32 s{RB+2}, s{sbn}, 0",
             f"s_mov_b32 m0, s{sm0a}", f"s_add_u32 s{sbc}, s{sbc}, 1",
             f"buffer_load_dwordx4 v{vpa}, {sr(RA,4)}, 0 offen lds",
             f"s_mov_b32 m0, s{smend}", f"s_add_u32 s{sm0a}, s{sm0a}, 1024",
             f"buffer_load_dwordx4 v{vp128}, {sr(RB,4)}, 0 offen lds",
             f"s_min_u32 s{sm0a}, s{sm0a}, s{smend}",
             f"s_mov_b64 {sr(RA,2)}, {sr(QE,2)}", f"s_mov_b32 s{RA+2}, s{QE+2}"]
        for e in range(12): o.append(f"s_mov_b32 s{QE+e}, s{QE+3+e}")
        o.append(f"s_mov_b32 s{QE+14}, 0")
        o += [f"s_cmp_ge_u32 s{sbc}, 4", f"s_cselect_b64 vcc, -1, 0", f"v_cndmask_b32 v{vpa}, v{vpa}, v{vpb}, vcc", f"v_cndmask_b32 v{vpb}, v{vpb}, v{vp128}, vcc"]
        return o
    vC, vN = k.v(), k.v()
    k.e(f"s_mov_b32 s{exact}, 0")
    lstart = k.lab("bstart")
    k.e(f"{lstart}:")
    k.e(f"""
    s_waitcnt vmcnt(4)
    s_barrier
    v_add_u32 v{vC}, 98304, v{v16}
    v_add_u32 v{vN}, 131072, v{v16}
    s_mov_b32 s{snx}, 65536
    s_mov_b32 s{skv}, {KV+32768}
    s_mov_b32 s{sc}, 0
    ds_read_b128 {vr(KF,4)}, v{vC}
    ds_read_b128 {vr(KF+4,4)}, v{vC} offset:1024
    """)
    for i in range(16): k.e(f"v_mov_b32 v{O+i}, 0")
    for i in range(4): k.e(f"v_mov_b32 v{L+i}, 0")
    lskip = k.lab("skipmax")
    k.e(f"""
    s_waitcnt lgkmcnt(0)
    s_cmp_lg_u32 s{exact}, 0
    s_cbranch_scc1 {lskip}
    v_mfma_f32_32x32x16_bf16 {vr(S0,16)}, {vr(KF,4)}, {vr(Q,4)}, 0
    v_mfma_f32_32x32x16_bf16 {vr(S0,16)}, {vr(KF+4,4)}, {vr(Q+4,4)}, {vr(S0,16)}
    s_nop 15
    s_nop 3
    v_max_f32 v{t}, v{S0}, v{S0+1}
    """)
    for i in range(2, 16, 2): k.e(f"v_max3_f32 v{t}, v{t}, v{S0+i}, v{S0+i+1}")
    def finish_max():
        k.e(f"""
        v_mov_b32 v{t2}, v{t}
        s_nop 1
        v_permlane32_swap_b32 v{t}, v{t2}
        s_nop 1
        v_max_f32 v{t}, v{t}, v{t2}
        v_sub_f32 v{t}, 0, v{t}
        """)
        for i in range(16): k.e(f"v_mov_b32 v{C+i}, v{t}")
        k.e("s_nop 1")
    finish_max()
    k.e(f"""
    {lskip}:
    v_mfma_f32_32x32x16_bf16 {vr(S0,16)}, {vr(KF,4)}, {vr(Q,4)}, {vr(C,16)}
    v_mfma_f32_32x32x16_bf16 {vr(S0,16)}, {vr(KF+4,4)}, {vr(Q+4,4)}, {vr(S0,16)}
    ds_read_b128 {vr(KF,4)}, v{vC} offset:4096
    ds_read_b128 {vr(KF+4,4)}, v{vC} offset:5120
    ds_read_b128 {vr(VF,4)}, v{vC} offset:2048
    """)
    for i in range(4): k.e(f"v_mov_b32 v{Pp+4+i}, 0\nv_mov_b32 v{VF+4+i}, 0")
    k.e("s_waitcnt lgkmcnt(0)")
    if OPT.get("prio"):
        lp = k.lab("prio")
        k.e(f"s_cmp_lt_u32 s{k.sw}, 4\ns_cbranch_scc1 {lp}\ns_setprio 1\n{lp}:")
    if OPT.get("half"):
        lp = k.lab("half")
        k.e(f"s_cmp_lt_u32 s{k.sw}, 4\ns_cbranch_scc1 {lp}\ns_endpgm\n{lp}:")
    k.stamp_at(4)
    lb = k.lab("bloop")
    if OPT.get("align"): k.e(".p2align 6")
    k.e(f"{lb}:")
    for n in range(8):
        Sc, Sn = (S0, S1) if n % 2 == 0 else (S1, S0)
        if n == 4:
            if not OPT.get("nobar"): k.e(f"s_waitcnt vmcnt(2)\ns_barrier")
            k.e(f"s_lshl_b32 s3, s{k.sw}, 12\ns_add_u32 m0, s3, s{snx}")
        sd = side()
        xtra = {0: sd[:5], 1: sd[5:]}.get(n, [])
        if n >= 4: xtra = [f"buffer_load_dwordx4 v{vdk}, {sr(rws,4)}, s{skv} offen offset:{(n-4)*1024} lds"]
        if n == 0: xtra = xtra + [f"s_add_u32 s{skv}, s{skv}, 32768"]
        xtra = "\n".join(xtra)
        if n == 7:
            k.e(f"""
            s_mov_b32 s{sp}, s{snx}
            s_add_u32 s{snx}, s{snx}, 32768
            s_cmp_eq_u32 s{snx}, 163840
            s_cselect_b32 s{snx}, 65536, s{snx}
            s_add_u32 s{sc}, s{sc}, 1
            s_cmp_lt_u32 s{sc}, 8
            """)
        def rdaddr(blk, off):
            return (f"v{vC} offset:{blk*4096+off}" if blk < 8 else f"v{vN} offset:{(blk-8)*4096+off}")
        ex = lambda i: f"v_exp_f32 v{Sc+i}, v{Sc+i}"
        cv = lambda i: f"v_cvt_pk_bf16_f32 v{Pp+i}, v{Sc+2*i}, v{Sc+2*i+1}"
        def emit(txt):
            L_ = [x.strip() for x in txt.strip().split("\n") if x.strip()]
            if OPT.get("nords"): L_ = [x for x in L_ if not x.startswith("ds_read") and not x.startswith("s_waitcnt")]
            if OPT.get("nol"): L_ = [x for x in L_ if "16x16x32" not in x]
            if OPT.get("nomfma"): L_ = [x for x in L_ if "mfma" not in x]
            if OPT.get("nocvt"): L_ = [x for x in L_ if "cvt_pk" not in x]
            if OPT.get("c0"): L_ = [x.replace(vr(C,16), "0") for x in L_]
            k.e("\n".join(L_))
        emit(f"""
        s_waitcnt lgkmcnt(2)
        v_mfma_f32_32x32x16_bf16 {vr(Sn,16)}, {vr(KF,4)}, {vr(Q,4)}, {vr(C,16)}
        ds_read_b128 {vr(KF,4)}, {rdaddr(n+2,0)}
        {ex(0)}
        {ex(1)}
        {ex(2)}
        v_mfma_f32_32x32x16_bf16 {vr(O,16)}, {vr(VF+4,4)}, {vr(Pp+4,4)}, {vr(O,16)}
        ds_read_b128 {vr(VF+4,4)}, {rdaddr(n,3072)}
        {ex(3)}
        {cv(0)}
        {ex(4)}
        {cv(1)}
        v_mfma_f32_16x16x32_bf16 {vr(L,4)}, {vr(ONES,4)}, {vr(Pp+4,4)}, {vr(L,4)}
        {ex(5)}
        s_waitcnt lgkmcnt(2)
        v_mfma_f32_32x32x16_bf16 {vr(Sn,16)}, {vr(KF+4,4)}, {vr(Q+4,4)}, {vr(Sn,16)}
        ds_read_b128 {vr(KF+4,4)}, {rdaddr(n+2,1024)}
        {ex(6)}
        {cv(2)}
        {ex(7)}
        {ex(8)}
        {cv(3)}
        {ex(9)}
        {xtra}
        {ex(10)}
        v_mfma_f32_32x32x16_bf16 {vr(O,16)}, {vr(VF,4)}, {vr(Pp,4)}, {vr(O,16)}
        ds_read_b128 {vr(VF,4)}, {rdaddr(n+1,2048)}
        {ex(11)}
        {cv(4)}
        {ex(12)}
        {cv(5)}
        v_mfma_f32_16x16x32_bf16 {vr(L,4)}, {vr(ONES,4)}, {vr(Pp,4)}, {vr(L,4)}
        {ex(13)}
        {ex(14)}
        {ex(15)}
        {cv(6)}
        {cv(7)}
        """)
    k.e(f"""
    v_mov_b32 v{vC}, v{vN}
    v_add_u32 v{vN}, s{sp}, v{v16}
    s_cbranch_scc1 {lb}
    s_waitcnt lgkmcnt(0)
    v_mfma_f32_32x32x16_bf16 {vr(O,16)}, {vr(VF+4,4)}, {vr(Pp+4,4)}, {vr(O,16)}
    v_mfma_f32_16x16x32_bf16 {vr(L,4)}, {vr(ONES,4)}, {vr(Pp+4,4)}, {vr(L,4)}
    s_cmp_lg_u32 s{exact}, 0
    s_waitcnt vmcnt(0)
    s_nop 15
    """)
    k.stamp_at(5)
    lout = k.lab("out"); lnb = k.lab("nobad")
    k.e(f"""
    s_cbranch_scc1 {lout}
    s_sub_u32 s3, s{smend}, 4096
    v_add_u32 v{t}, s3, v{v16}
    ds_read_b128 {vr(S1,4)}, v{t}
    ds_read_b128 {vr(S1+4,4)}, v{t} offset:1024
    ds_read_b128 {vr(S1+8,4)}, v{t} offset:2048
    ds_read_b128 {vr(S1+12,4)}, v{t} offset:3072
    v_mov_b32 v{S0+8}, 0x00003f80
    v_mov_b32 v{S0+9}, 0x3f800000
    """)
    for i in range(8): k.e(f"v_mov_b32 v{S0+i}, 0")
    for jx in range(4):
        k.e(f"s_waitcnt lgkmcnt({3-jx})")
        for d in range(4):
            k.e(f"v_dot2c_f32_bf16 v{S0+2*d}, v{S1+4*jx+d}, v{S0+8}\nv_dot2c_f32_bf16 v{S0+2*d+1}, v{S1+4*jx+d}, v{S0+9}")
    k.e(f"""
    v_lshlrev_b32 v{t}, 5, v0
    s_nop 2
    ds_write_b128 v{t}, {vr(S0,4)} offset:{CSL}
    ds_write_b128 v{t}, {vr(S0+4,4)} offset:{CSL+16}
    v_mov_b32 v{t}, {hex(f2u(2.0**100))}
    v_cmp_nlt_f32 vcc, v{L}, v{t}
    v_mov_b32 v{t}, 0
    s_cmp_lg_u64 vcc, 0
    s_cselect_b32 s3, 1, 0
    v_mov_b32 v{t2}, s3
    s_lshl_b32 s3, s{k.sw}, 2
    v_mov_b32 v{t}, s3
    ds_write_b32 v{t}, v{t2} offset:{FLAG}
    v_mov_b32 v{t}, 0
    s_waitcnt lgkmcnt(0)
    s_barrier
    ds_read_b128 {vr(KF,4)}, v{t} offset:{FLAG}
    ds_read_b128 {vr(KF+4,4)}, v{t} offset:{FLAG+16}
    s_waitcnt lgkmcnt(0)
    v_or3_b32 v{KF}, v{KF}, v{KF+1}, v{KF+2}
    v_or3_b32 v{KF}, v{KF}, v{KF+3}, v{KF+4}
    v_or3_b32 v{KF}, v{KF}, v{KF+5}, v{KF+6}
    v_or_b32 v{KF}, v{KF}, v{KF+7}
    s_nop 1
    v_readfirstlane_b32 s3, v{KF}
    s_nop 3
    s_cmp_eq_u32 s3, 0
    s_cbranch_scc1 {lout}
    """)
    lm = k.lab("maxloop")
    k.e(f"""
    s_mov_b32 s{exact}, 1
    s_mov_b32 s{skv}, {KV}
    v_mov_b32 v{t}, 0xff800000
    {lm}:
    buffer_load_dwordx4 {vr(KF,4)}, v{v16}, {sr(rws,4)}, s{skv} offen
    buffer_load_dwordx4 {vr(KF+4,4)}, v{v16}, {sr(rws,4)}, s{skv} offen offset:1024
    s_waitcnt vmcnt(0)
    v_mfma_f32_32x32x16_bf16 {vr(S0,16)}, {vr(KF,4)}, {vr(Q,4)}, 0
    v_mfma_f32_32x32x16_bf16 {vr(S0,16)}, {vr(KF+4,4)}, {vr(Q+4,4)}, {vr(S0,16)}
    s_nop 15
    s_nop 3
    """)
    for i in range(0, 16, 2): k.e(f"v_max3_f32 v{t}, v{t}, v{S0+i}, v{S0+i+1}")
    k.e(f"""
    s_add_u32 s{skv}, s{skv}, 4096
    s_cmp_lt_u32 s{skv}, {KV+262144}
    s_cbranch_scc1 {lm}
    """)
    finish_max()
    k.e(f"s_mov_b32 s{skv}, {KV}")
    k.e("\n".join(dma_kv(98304) + dma_kv(131072)))
    k.e(f"s_branch {lstart}")
    k.e(f"{lout}:")
    so = k.s()
    k.e(f"""
    v_rcp_f32 v{t}, v{L}
    s_lshl_b32 s{so}, s{tb}, 18
    s_lshl_b32 s3, s{hp}, 14
    s_add_u32 s{so}, s{so}, s3
    s_lshl_b32 s3, s{hd}, 13
    s_add_u32 s{so}, s{so}, s3
    s_add_u32 s{so}, s{so}, {OO}
    """)
    for i in range(16): k.e(f"v_mul_f32 v{O+i}, v{O+i}, v{t}")
    for sp in range(2):
        for u in range(2):
            jj = sp + 2*u
            k.e(f"v_cvt_pk_bf16_f32 v{Pp+4*sp+2*u}, v{O+4*jj}, v{O+4*jj+1}")
            k.e(f"v_cvt_pk_bf16_f32 v{Pp+4*sp+2*u+1}, v{O+4*jj+2}, v{O+4*jj+3}")
    for sp_ in range(2):
        k.e(f"buffer_store_dwordx4 {vr(Pp+4*sp_,4)}, v{vB0}, {sr(rws,4)}, s{so} offen offset:{sp_*512}")
    k.e(f"""
    s_cmp_ge_u32 s{k.sw}, 2
    s_cbranch_scc1 {k.end}
    s_cmp_ge_u32 s2, 224
    s_cbranch_scc1 {k.end}
    v_lshlrev_b32 v{t}, 2, v0
    """)
    for i in range(32): k.e(f"ds_read_b32 v{S0+i}, v{t} offset:{CSL+i*512}")
    k.e(f"""
    s_mul_i32 s{so}, s{ks}, {3584*4}
    s_lshl_b32 s3, s{cb}, 9
    s_add_u32 s{so}, s{so}, s3
    s_add_u32 s{so}, s{so}, {CS}
    s_waitcnt lgkmcnt(0)
    """)
    for st in (16, 8, 4, 2, 1):
        for i in range(st): k.e(f"v_add_f32 v{S0+i}, v{S0+i}, v{S0+st+i}")
    k.e(f"buffer_store_dword v{S0}, v{t}, {sr(rws,4)}, s{so} offen")
    finish(k)
    return k

HEADER = open("sequential_preLN__grouped_kv_mqa__mixer_gmlp__prompt.s.ref").read().split("; Override launch")[0]

if __name__ == "__main__":
    if "stamp" in sys.argv: STAMP[0] = True
    import gemms, gen
    for a in sys.argv[2:]:
        if "=" in a: gen.OPT[a.split("=")[0]] = int(a.split("=")[1])
    kerns = gemms.all_kernels()
    if "nk" in gen.OPT: kerns = kerns[:gen.OPT["nk"]]
    out = sys.argv[1] if len(sys.argv) > 1 else "sequential_preLN__grouped_kv_mqa__mixer_gmlp__prompt.s"
    open(out, "w").write(assemble_file(HEADER, kerns))
    for k in kerns: print(k.name, "vgpr", k.nv, "sgpr", k.ns, "lds", k.lds, "lines", len(k.L))
```
